```python
import torch

def _softmax(x, axis=-1):
    return torch.softmax(x, dim=axis)
def _gelu(x):
    return torch.nn.functional.gelu(x, approximate="tanh")
def _silu(x):
    return torch.nn.functional.silu(x)
def _sigmoid(x):
    return torch.sigmoid(x)
def _layernorm(x, axis=-1, eps=1e-5):
    m = x.mean(dim=axis, keepdim=True)
    v = x.var(dim=axis, keepdim=True, unbiased=False)
    return (x - m) / torch.sqrt(v + eps)
def _scatter_add(tgt, idx, src, axis=0):
    return tgt.clone().index_add_(axis, idx, src)
def _segment_sum(src, seg, n):
    out = torch.zeros((n,) + src.shape[1:], dtype=src.dtype)
    return out.index_add_(0, seg, src)
def _pad(x, pw):
    flat = tuple(v for pair in reversed(pw) for v in pair)
    return torch.nn.functional.pad(x, flat)

kernel_name = 'gated_mix__ssm_conv_s5__glu_gated_swiglu__prompt'

def setup_inputs():

    _w = (lambda a: (lambda t: t.to(torch.bfloat16) if t.is_floating_point() else t)(torch.as_tensor(a)))
    def _A_setup():
        B, S, D = 1, 2048, 1024
        P = D
        Lambda_re = -0.5 * (lambda _x: torch.exp(torch.as_tensor(_x)))((lambda *s: torch.randn(*s, dtype=torch.bfloat16) * 0.2)(P))
        Lambda_im = (lambda *s: torch.randn(*s, dtype=torch.bfloat16) * 0.4)(P) * 1.0
        B_re = (lambda *s: torch.randn(*s, dtype=torch.bfloat16) * 0.2)(P, D) * (D ** -0.5)
        B_im = (lambda *s: torch.randn(*s, dtype=torch.bfloat16) * 0.2)(P, D) * (D ** -0.5)
        C_re = (lambda *s: torch.randn(*s, dtype=torch.bfloat16) * 0.2)(D, P) * (P ** -0.5)
        C_im = (lambda *s: torch.randn(*s, dtype=torch.bfloat16) * 0.2)(D, P) * (P ** -0.5)
        log_dt = (lambda *s: torch.randn(*s, dtype=torch.bfloat16) * 0.2)(P) * 0.3 - 2.0
        Dskip = (lambda *s: torch.randn(*s, dtype=torch.bfloat16) * 0.05)(D)
        return {
            "x": _w((lambda *s: torch.randn(*s, dtype=torch.bfloat16) * 0.05)(B, S, D)),
            "Lambda_re": _w(Lambda_re),
            "Lambda_im": _w(Lambda_im),
            "B_re": _w(B_re),
            "B_im": _w(B_im),
            "C_re": _w(C_re),
            "C_im": _w(C_im),
            "log_dt": _w(log_dt),
            "Dskip": _w(Dskip),
        }
    _A_in = _A_setup()

    def _B_setup():
        B, S, D, F = 1, 2048, 1024, 3584
        return {
            "x": _w((lambda *s: torch.randn(*s, dtype=torch.bfloat16) * 0.05)(B, S, D)),
            "w1": _w((lambda *s: torch.randn(*s, dtype=torch.bfloat16) * 0.8)(D, F) * (2.0 / D) ** 0.5),
            "w3": _w((lambda *s: torch.randn(*s, dtype=torch.bfloat16) * 0.8)(D, F) * (2.0 / D) ** 0.5),
            "w2": _w((lambda *s: torch.randn(*s, dtype=torch.bfloat16) * 0.8)(F, D) * (2.0 / F) ** 0.5),
        }
    _B_in = _B_setup()

    return {
        "A_x": _A_in["x"],
        "A_Lambda_re": _A_in["Lambda_re"],
        "A_Lambda_im": _A_in["Lambda_im"],
        "A_B_re": _A_in["B_re"],
        "A_B_im": _A_in["B_im"],
        "A_C_re": _A_in["C_re"],
        "A_C_im": _A_in["C_im"],
        "A_log_dt": _A_in["log_dt"],
        "A_Dskip": _A_in["Dskip"],
        "B_x": _B_in["x"],
        "B_w1": _B_in["w1"],
        "B_w3": _B_in["w3"],
        "B_w2": _B_in["w2"],
        "gate_w": _w((lambda *s: torch.randn(*s, dtype=torch.bfloat16) * 0.05)(1024) * 16.0),
    }

def reference(A_x, A_Lambda_re, A_Lambda_im, A_B_re, A_B_im, A_C_re, A_C_im, A_log_dt, A_Dskip, B_x, B_w1, B_w3, B_w2, gate_w):
    def _A_ref(x, Lambda_re, Lambda_im, B_re, B_im, C_re, C_im, log_dt, Dskip):
        Bsz, L, H = x.shape
        Lam = Lambda_re + 1j * Lambda_im
        Bmat = B_re + 1j * B_im
        Cmat = C_re + 1j * C_im
        dt = torch.exp(log_dt)
        Lam_bar = torch.exp(dt * Lam)
        B_bar = ((Lam_bar - 1.0) / Lam)[:, None] * Bmat
        Bu = torch.einsum("bld,pd->blp", x + 0j, B_bar)
        h = torch.zeros_like(Bu[:, 0, :])
        hs = []
        for t in range(L):
            h = Lam_bar[None, :] * h + Bu[:, t, :]
            hs.append(h)
        hseq = torch.stack(hs, 1)
        y = 2.0 * torch.einsum("blp,dp->bld", hseq, Cmat).real + x * Dskip[None, None, :]
        return y

    def _B_ref(x, w1, w3, w2):
        gate = torch.einsum("bsd,df->bsf", x, w1)
        up = torch.einsum("bsd,df->bsf", x, w3)
        h = _silu(gate) * up
        out = torch.einsum("bsf,fd->bsd", h, w2)
        return out

    x = A_x
    g = _sigmoid((x * gate_w).sum(-1, keepdims=True))
    a = _A_ref(x, A_Lambda_re, A_Lambda_im, A_B_re, A_B_im, A_C_re, A_C_im, A_log_dt, A_Dskip)
    b = _B_ref(x, B_w1, B_w3, B_w2)
    return g * a + (1 - g) * b
```

```python
class Asm:
    def __init__(self):
        self.lines = []
        self.lq = []
        self.vq = []

    def __call__(self, s):
        self.lines.append("  " + s)

    def label(self, s):
        self.lines.append(s + ":")

    def comment(self, s):
        self.lines.append("  ; " + s)

    def lds(self, s, tag):
        self(s)
        self.lq.append(tag)

    def wait_lds(self, tags):
        if isinstance(tags, str):
            tags = [tags]
        last = -1
        for i, t in enumerate(self.lq):
            if t in tags:
                last = i
        if last < 0:
            return
        n = len(self.lq) - 1 - last
        assert n <= 15, n
        self("s_waitcnt lgkmcnt(%d)" % n)
        self.lq = self.lq[last + 1:]

    def wait_lds_all(self):
        self("s_waitcnt lgkmcnt(0)")
        self.lq = []

    def vm(self, s, tag):
        self(s)
        self.vq.append(tag)

    def wait_vm(self, tags):
        if isinstance(tags, str):
            tags = [tags]
        last = -1
        for i, t in enumerate(self.vq):
            if t in tags:
                last = i
        if last < 0:
            return
        n = len(self.vq) - 1 - last
        assert n <= 63, n
        self("s_waitcnt vmcnt(%d)" % n)
        self.vq = self.vq[last + 1:]

    def wait_vm_all(self):
        self("s_waitcnt vmcnt(0)")
        self.vq = []

    def text(self):
        return "\n".join(self.lines) + "\n"


def vr(base, n=4):
    return "v[%d:%d]" % (base, base + n - 1)


def ar(base, n=4):
    return "a[%d:%d]" % (base, base + n - 1)


def sr(base, n=4):
    return "s[%d:%d]" % (base, base + n - 1)


def kernel_header(name):
    return (".globl %s\n.p2align 8\n.type %s,@function\n%s:\n" % (name, name, name))


def kernel_desc(name, nvgpr, accum, nsgpr=102):
    return """.p2align 6
.amdhsa_kernel %s
  .amdhsa_next_free_vgpr %d
  .amdhsa_next_free_sgpr %d
  .amdhsa_accum_offset %d
  .amdhsa_group_segment_fixed_size 0
  .amdhsa_kernarg_size 136
  .amdhsa_user_sgpr_count 2
  .amdhsa_user_sgpr_kernarg_segment_ptr 1
  .amdhsa_system_sgpr_workgroup_id_x 1
.end_amdhsa_kernel
""" % (name, nvgpr, nsgpr, accum)
```

```python
from asmlib import *

L, D, P, F = 2048, 1024, 1024, 3584
HMID_OFF = 0
HLOC_OFF = 0x1000000
E_OFF = 0x2000000
HS_OFF = 0x2100000
G_OFF = 0x2900000
WS_BYTES = 0x10000000

KA = dict(x=64, lre=66, lim=68, bre=70, bim=72, cre=74, cim=76, ldt=78, dskip=80, bx=82, w1=84, w3=86,
          w2=88, gw=90, out=92, dbg=94, ws=96)


def load_kernargs(a):
    a("s_load_dwordx16 s[64:79], s[0:1], 0")
    a("s_load_dwordx16 s[80:95], s[0:1], 64")
    a("s_load_dwordx2 s[96:97], s[0:1], 128")


def make_srd(a, dst, ptr, nbytes):
    a("s_mov_b32 s%d, s%d" % (dst, ptr))
    a("s_and_b32 s%d, s%d, 0xffff" % (dst + 1, ptr + 1))
    a("s_mov_b32 s%d, 0x%x" % (dst + 2, nbytes))
    a("s_mov_b32 s%d, 0x00020000" % (dst + 3))


LOG2E = 0x3fb8aa3b
INV2PI = 0x3e22f983


def ssm_params(a, raw, out, t):
    lre, lim, dt, t0, t1, t2 = ["v%d" % (t + i) for i in range(6)]
    o = ["v%d" % (out + i) for i in range(4)]
    a("v_lshlrev_b32 %s, 16, v%d" % (lre, raw))
    a("v_lshlrev_b32 %s, 16, v%d" % (lim, raw + 1))
    a("v_lshlrev_b32 %s, 16, v%d" % (dt, raw + 2))
    a("v_mul_f32 %s, 0x%x, %s" % (dt, LOG2E, dt))
    a("v_exp_f32 %s, %s" % (dt, dt))
    a("s_nop 0")
    a("v_cvt_pk_bf16_f32 %s, %s, %s" % (dt, dt, dt))
    a("v_lshlrev_b32 %s, 16, %s" % (dt, dt))
    a("v_mul_f32 %s, %s, %s" % (t0, dt, lre))
    a("v_mul_f32 %s, %s, %s" % (t1, dt, lim))
    a("v_mul_f32 %s, 0x%x, %s" % (t0, LOG2E, t0))
    a("v_exp_f32 %s, %s" % (t0, t0))
    a("v_mul_f32 %s, 0x%x, %s" % (t1, INV2PI, t1))
    a("v_cos_f32 %s, %s" % (t2, t1))
    a("v_sin_f32 %s, %s" % (t1, t1))
    a("s_nop 0")
    a("v_mul_f32 %s, %s, %s" % (o[0], t0, t2))
    a("v_mul_f32 %s, %s, %s" % (o[1], t0, t1))
    a("v_add_f32 %s, -1.0, %s" % (t0, o[0]))
    a("v_mul_f32 %s, %s, %s" % (t1, lre, lre))
    a("v_fma_f32 %s, %s, %s, %s" % (t1, lim, lim, t1))
    a("v_rcp_f32 %s, %s" % (t1, t1))
    a("v_mul_f32 %s, %s, %s" % (t2, t0, lre))
    a("v_fma_f32 %s, %s, %s, %s" % (t2, o[1], lim, t2))
    a("v_mul_f32 %s, %s, %s" % (o[2], t2, t1))
    a("v_mul_f32 %s, %s, %s" % (t2, o[1], lre))
    a("v_fma_f32 %s, -%s, %s, %s" % (t2, t0, lim, t2))
    a("v_mul_f32 %s, %s, %s" % (o[3], t2, t1))


def cmul(a, dr, di, ar_, ai, br, bi, t):
    a("v_mul_f32 v%d, v%d, v%d" % (t, ar_, br))
    a("v_fma_f32 v%d, -v%d, v%d, v%d" % (t, ai, bi, t))
    a("v_mul_f32 v%d, v%d, v%d" % (t + 1, ar_, bi))
    a("v_fma_f32 v%d, v%d, v%d, v%d" % (di, ai, br, t + 1))
    a("v_mov_b32 v%d, v%d" % (dr, t))


def cfma(a, dr, di, ar_, ai, br, bi, cr, ci, t):
    a("v_fma_f32 v%d, v%d, v%d, v%d" % (t, ar_, br, cr))
    a("v_fma_f32 v%d, v%d, v%d, v%d" % (t + 1, ar_, bi, ci))
    a("v_fma_f32 v%d, -v%d, v%d, v%d" % (t, ai, bi, t))
    a("v_fma_f32 v%d, v%d, v%d, v%d" % (di, ai, br, t + 1))
    a("v_mov_b32 v%d, v%d" % (dr, t))
```

```python
from common import *

NAME = "k1_kernel"
BUF = 34816
XOFF, BMOFF, WOFF = 0, 16384, 20480
LDS_BYTES = 4 * BUF

SRD_X, SRD_BM, SRD_W1, SRD_W3, SRD_WS, SRD_P = 8, 12, 16, 20, 24, 28
S_SX, S_SW, S_CNT, S_WAVE, S_MI, S_NJ = 40, 41, 42, 43, 44, 45
S_MASK = 46
S_M0X, S_M0B, S_M0W1, S_M0W3 = 48, 49, 50, 51
V_TID = 0
V_VX = 2
V_VB = 6
V_VW = 7
V_VA = 10
V_VBM = 14
V_VWB = 18
V_RAW = 22
V_T = 32
V_A = 48
V_RING = 80
NSLOT = 6
PD = 4
V_EPI = 104
ACCV = 224


def acc(j, mt):
    idx = j * 4 + mt
    if idx < 64:
        return ("a", idx * 4)
    return ("v", ACCV + (idx - 64) * 4)


def accs(j, mt):
    k, b = acc(j, mt)
    return "%s[%d:%d]" % (k, b, b + 3)


def gen():
    a = Asm()
    a("s_cmp_ge_u32 s2, 256")
    a("s_cbranch_scc1 K1_done")
    load_kernargs(a)
    a("v_lshrrev_b32 v1, 6, v0")
    a("s_nop 0")
    a("v_readfirstlane_b32 s%d, v1" % S_WAVE)
    a("s_and_b32 s%d, s2, 7" % S_NJ)
    a("s_lshl_b32 s%d, s%d, 2" % (S_NJ, S_NJ))
    a("s_lshr_b32 s3, s2, 3")
    a("s_and_b32 s3, s3, 3")
    a("s_add_u32 s%d, s%d, s3" % (S_NJ, S_NJ))
    a("s_lshr_b32 s%d, s2, 5" % S_MI)
    a("v_and_b32 v1, 63, v0")
    a("s_waitcnt lgkmcnt(0)")
    make_srd(a, SRD_X, KA['x'], L * D * 2)
    make_srd(a, SRD_W1, KA['w1'], D * F * 2)
    make_srd(a, SRD_W3, KA['w3'], D * F * 2)
    make_srd(a, SRD_WS, KA['ws'], WS_BYTES)
    a("s_cmp_lt_u32 s%d, 2" % S_WAVE)
    a("s_cselect_b32 s%d, s%d, s%d" % (SRD_BM, KA['bre'], KA['bim']))
    a("s_cselect_b32 s%d, s%d, s%d" % (SRD_BM + 1, KA['bre'] + 1, KA['bim'] + 1))
    a("s_and_b32 s%d, s%d, 0xffff" % (SRD_BM + 1, SRD_BM + 1))
    a("s_mov_b32 s%d, 0x%x" % (SRD_BM + 2, P * D * 2))
    a("s_mov_b32 s%d, 0x00020000" % (SRD_BM + 3))
    a("s_lshl_b32 s3, s%d, 5" % S_NJ)
    a("v_and_b32 v%d, 15, v0" % V_T)
    a("v_add_u32 v%d, s3, v%d" % (V_T, V_T))
    a("v_lshlrev_b32 v%d, 1, v%d" % (V_T, V_T))
    a("v_and_b32 v%d, 31, v0" % (V_T + 1))
    a("v_add_u32 v%d, s3, v%d" % (V_T + 1, V_T + 1))
    a("v_lshlrev_b32 v%d, 1, v%d" % (V_T + 1, V_T + 1))
    for i, nm in enumerate(['lre', 'lim', 'ldt']):
        make_srd(a, SRD_P, KA[nm], P * 2)
        a("buffer_load_ushort v%d, v%d, s[%d:%d], 0 offen" % (V_RAW + i, V_T, SRD_P, SRD_P + 3))
        a("buffer_load_ushort v%d, v%d, s[%d:%d], 0 offen offset:32" % (V_RAW + 3 + i, V_T, SRD_P, SRD_P + 3))
        a("buffer_load_ushort v%d, v%d, s[%d:%d], 0 offen" % (V_RAW + 6 + i, V_T + 1, SRD_P, SRD_P + 3))
        a("s_waitcnt vmcnt(0)")
    a("v_lshrrev_b32 v%d, 5, v1" % V_T)
    a("v_lshlrev_b32 v%d, 1, v%d" % (V_T, V_T))
    a("v_and_b32 v%d, 3, v1" % (V_T + 1))
    a("v_xor_b32 v%d, v%d, v%d" % (V_T, V_T, V_T + 1))
    a("v_lshlrev_b32 v%d, 4, v%d" % (V_T, V_T))
    a("v_lshrrev_b32 v%d, 2, v1" % (V_T + 1))
    a("v_lshlrev_b32 v%d, 11, v%d" % (V_T + 1, V_T + 1))
    a("v_add_u32 v%d, v%d, v%d" % (V_T, V_T, V_T + 1))
    a("s_lshl_b32 s3, s%d, 8" % S_MI)
    a("s_lshl_b32 s4, s%d, 6" % S_WAVE)
    a("s_add_u32 s3, s3, s4")
    a("s_lshl_b32 s3, s3, 11")
    for i in range(4):
        a("s_add_u32 s4, s3, 0x%x" % (i * 16 * 2048 - i * 1024))
        a("v_add_u32 v%d, s4, v%d" % (V_VX + i, V_T))
    a("s_lshl_b32 s3, s%d, 5" % S_NJ)
    a("s_and_b32 s4, s%d, 1" % S_WAVE)
    a("s_lshl_b32 s4, s4, 4")
    a("s_add_u32 s3, s3, s4")
    a("s_lshl_b32 s3, s3, 11")
    a("v_add_u32 v%d, s3, v%d" % (V_VB, V_T))
    a("v_mul_u32_u24 v%d, 37, v1" % V_T)
    a("v_lshrrev_b32 v%d, 9, v%d" % (V_T, V_T))
    a("v_mul_u32_u24 v%d, 14, v%d" % (V_T + 1, V_T))
    a("v_sub_u32 v%d, v1, v%d" % (V_T + 1, V_T + 1))
    a("v_lshlrev_b32 v%d, 4, v%d" % (V_T + 1, V_T + 1))
    a("s_movk_i32 s4, 0x1c00")
    a("v_mul_lo_u32 v%d, s4, v%d" % (V_T, V_T))
    a("v_add_u32 v%d, v%d, v%d" % (V_T, V_T, V_T + 1))
    a("s_mul_i32 s3, s%d, 224" % S_NJ)
    for t in range(2):
        a("s_lshl_b32 s5, s%d, 1" % S_WAVE)
        a("s_add_u32 s5, s5, %d" % t)
        a("s_and_b32 s6, s5, 3")
        a("s_lshl_b32 s6, s6, 3")
        a("s_lshr_b32 s5, s5, 2")
        a("s_lshl_b32 s5, s5, 2")
        a("s_add_u32 s5, s5, s6")
        a("s_mul_i32 s5, s5, 7168")
        a("s_add_u32 s5, s5, s3")
        a("s_sub_u32 s5, s5, %d" % (t * 896))
        a("v_add_u32 v%d, s5, v%d" % (V_VW + t, V_T))
    a("s_mov_b32 s%d, -1" % S_MASK)
    a("s_mov_b32 s%d, 0x00ffffff" % (S_MASK + 1))
    a("s_lshl_b32 s%d, s%d, 12" % (S_M0X, S_WAVE))
    a("s_lshl_b32 s%d, s%d, 10" % (S_M0B, S_WAVE))
    a("s_add_u32 s%d, s%d, %d" % (S_M0B, S_M0B, BMOFF))
    a("s_mul_i32 s%d, s%d, 1792" % (S_M0W1, S_WAVE))
    a("s_add_u32 s%d, s%d, %d" % (S_M0W1, S_M0W1, WOFF))
    a("s_add_u32 s%d, s%d, 7168" % (S_M0W3, S_M0W1))
    a("v_lshrrev_b32 v%d, 4, v1" % V_T)
    a("v_lshrrev_b32 v%d, 2, v1" % (V_T + 1))
    a("v_and_b32 v%d, 2, v%d" % (V_T + 1, V_T + 1))
    a("v_xor_b32 v%d, v%d, v%d" % (V_T, V_T, V_T + 1))
    a("v_lshlrev_b32 v%d, 4, v%d" % (V_T, V_T))
    a("v_and_b32 v%d, 15, v1" % (V_T + 1))
    a("v_lshlrev_b32 v%d, 6, v%d" % (V_T + 1, V_T + 1))
    a("v_add_u32 v%d, v%d, v%d" % (V_T, V_T, V_T + 1))
    a("s_lshl_b32 s3, s%d, 12" % S_WAVE)
    for b in range(4):
        a("s_add_u32 s4, s3, %d" % (b * BUF + XOFF))
        a("v_add_u32 v%d, s4, v%d" % (V_VA + b, V_T))
        a("v_add_u32 v%d, 0x%x, v%d" % (V_VBM + b, b * BUF + BMOFF, V_T))
    a("v_lshrrev_b32 v%d, 4, v1" % V_T)
    a("v_lshlrev_b32 v%d, 2, v%d" % (V_T, V_T))
    a("v_and_b32 v%d, 15, v1" % (V_T + 1))
    a("v_lshrrev_b32 v%d, 2, v%d" % (V_T + 1, V_T + 1))
    a("v_add_u32 v%d, v%d, v%d" % (V_T, V_T, V_T + 1))
    a("v_mul_u32_u24 v%d, 0xe0, v%d" % (V_T, V_T))
    a("v_and_b32 v%d, 3, v1" % (V_T + 1))
    a("v_lshlrev_b32 v%d, 3, v%d" % (V_T + 1, V_T + 1))
    a("v_add_u32 v%d, v%d, v%d" % (V_T, V_T, V_T + 1))
    for b in range(4):
        a("v_add_u32 v%d, 0x%x, v%d" % (V_VWB + b, b * BUF + WOFF, V_T))
    a("s_mov_b32 s%d, 0" % S_SX)
    a("s_mov_b32 s%d, 0" % S_SW)

    def dma(idx, b):
        tag = "dma%d" % b
        if idx < 4:
            if idx == 0:
                a("s_add_u32 m0, s%d, %d" % (S_M0X, b * BUF))
                a("s_nop 0")
            a.vm("buffer_load_dwordx4 v%d, s[%d:%d], s%d offen offset:%d lds" % (V_VX + idx, SRD_X, SRD_X + 3, S_SX, idx * 1024), tag)
        elif idx == 4:
            a("s_add_u32 m0, s%d, %d" % (S_M0B, b * BUF))
            a("s_nop 0")
            a.vm("buffer_load_dwordx4 v%d, s[%d:%d], s%d offen lds" % (V_VB, SRD_BM, SRD_BM + 3, S_SX), tag)
        else:
            mat, t = (idx - 5) // 2, (idx - 5) % 2
            srd = SRD_W1 if mat == 0 else SRD_W3
            if t == 0:
                a("s_add_u32 m0, s%d, %d" % (S_M0W1 if mat == 0 else S_M0W3, b * BUF))
            a("s_mov_b64 exec, s[%d:%d]" % (S_MASK, S_MASK + 1))
            a.vm("buffer_load_dwordx4 v%d, s[%d:%d], s%d offen offset:%d lds" % (V_VW + t, srd, srd + 3, S_SW, t * 896), tag)
            a("s_mov_b64 exec, -1")
        if idx == 8:
            a("s_add_u32 s%d, s%d, 64" % (S_SX, S_SX))
            a("s_add_u32 s%d, s%d, 0x%x" % (S_SW, S_SW, 32 * 7168))

    def read_frag(b, jj, slotctr):
        slot = V_RING + (slotctr % NSLOT) * 4
        tag = "f%d" % (slotctr % NSLOT)
        if jj < 4:
            a.lds("ds_read_b128 %s, v%d offset:%d" % (vr(slot), V_VBM + b, jj * 1024), tag)
        else:
            idx = jj - 4
            mat, t = idx // 7, idx % 7
            for h in range(2):
                a.lds("ds_read_b64_tr_b16 %s, v%d offset:%d" % (vr(slot + 2 * h, 2), V_VWB + b, mat * 7168 + t * 32 + h * 3584), tag)

    def read_a(b, mt, par):
        a.lds("ds_read_b128 %s, v%d offset:%d" % (vr(V_A + par * 16 + mt * 4), V_VA + b, mt * 1024), "A%d" % par)

    for i in range(9):
        dma(i, 0)
    for i in range(9):
        dma(i, 1)
    for i in range(256):
        a("v_accvgpr_write_b32 a%d, 0" % i)
    for i in range(32):
        a("v_mov_b32 v%d, 0" % (ACCV + i))
    a.wait_vm("dma0")
    a("s_barrier")
    for jj in range(PD):
        read_frag(0, jj, jj)
        read_a(0, jj, 0)
    a("s_mov_b32 s%d, 0" % S_CNT)
    lq0, vq0 = list(a.lq), list(a.vq)
    a.label("K1_loop")
    for b in range(4):
        par = b & 1
        nb, db = (b + 1) % 4, (b + 2) % 4
        for j in range(18):
            ctr = b * 18 + j
            if j < 9:
                dma(j, db)
            if j == 12:
                a.wait_vm("dma%d" % nb)
                a("s_barrier")
            jj = j + PD
            if jj < 18:
                read_frag(b, jj, ctr + PD)
            else:
                read_frag(nb, jj - 18, ctr + PD)
            if j >= 14:
                read_a(nb, j - 14, 1 - par)
            tags = ["f%d" % (ctr % NSLOT)]
            if j == 0:
                tags.append("A%d" % par)
            a.wait_lds(tags)
            slot = vr(V_RING + (ctr % NSLOT) * 4)
            for mt in range(4):
                xa = vr(V_A + par * 16 + mt * 4)
                if j < 4:
                    a("v_mfma_f32_16x16x32_bf16 %s, %s, %s, %s" % (accs(j, mt), xa, slot, accs(j, mt)))
                else:
                    a("v_mfma_f32_16x16x32_bf16 %s, %s, %s, %s" % (accs(j, mt), slot, xa, accs(j, mt)))
    assert a.lq == lq0 and a.vq == vq0, (a.lq, lq0, a.vq, vq0)
    a("s_add_u32 s%d, s%d, 1" % (S_CNT, S_CNT))
    a("s_cmp_lt_u32 s%d, 8" % S_CNT)
    a("s_cbranch_scc1 K1_loop")
    a.wait_vm_all()
    a.wait_lds_all()
    a("s_barrier")
    a("s_nop 7")

    SCS = 2064
    ESEG = 0
    SCB = 4096
    PR = V_EPI
    for i in range(3):
        ssm_params(a, V_RAW + 3 * i, PR + 4 * i, V_T)
    a("v_and_b32 v%d, 15, v1" % V_T)
    a("s_movk_i32 s3, %d" % SCS)
    a("v_mul_lo_u32 v%d, s3, v%d" % (V_T, V_T))
    a("v_lshrrev_b32 v%d, 4, v1" % (V_T + 1))
    a("v_lshlrev_b32 v%d, 5, v%d" % (V_T + 1, V_T + 1))
    a("v_add_u32 v%d, v%d, v%d" % (V_T, V_T, V_T + 1))
    a("s_lshl_b32 s3, s%d, 9" % S_WAVE)
    a("v_add_u32 v%d, s3, v%d" % (V_T, V_T))
    a("v_add_u32 v%d, %d, v%d" % (V_T, SCB, V_T))
    W = V_EPI + 16
    for ct in range(2):
        cr, ci = PR + 4 * ct + 2, PR + 4 * ct + 3
        for mt in range(4):
            _, ur = acc(ct, mt)
            _, ui = acc(2 + ct, mt)
            for r in range(4):
                a("v_accvgpr_read_b32 v%d, a%d" % (W + 16 + r, ur + r))
                a("v_accvgpr_read_b32 v%d, a%d" % (W + 20 + r, ui + r))
            for r in range(4):
                a("v_mul_f32 v%d, v%d, v%d" % (W + 2 * r, cr, W + 16 + r))
                a("v_fma_f32 v%d, -v%d, v%d, v%d" % (W + 2 * r, ci, W + 20 + r, W + 2 * r))
                a("v_mul_f32 v%d, v%d, v%d" % (W + 2 * r + 1, cr, W + 20 + r))
                a("v_fma_f32 v%d, v%d, v%d, v%d" % (W + 2 * r + 1, ci, W + 16 + r, W + 2 * r + 1))
            off = ct * 16 * SCS + mt * 128
            a("ds_write_b128 v%d, %s offset:%d" % (V_T, vr(W), off))
            a("ds_write_b128 v%d, %s offset:%d" % (V_T, vr(W + 4), off + 16))
    a("s_waitcnt lgkmcnt(0)")
    a("s_barrier")
    a("v_and_b32 v%d, 31, v0" % V_T)
    a("s_movk_i32 s3, %d" % SCS)
    a("v_mul_lo_u32 v%d, s3, v%d" % (V_T, V_T))
    a("v_lshrrev_b32 v%d, 5, v0" % (V_T + 1))
    a("v_lshlrev_b32 v%d, 8, v%d" % (V_T + 2, V_T + 1))
    a("v_add_u32 v%d, v%d, v%d" % (V_T, V_T, V_T + 2))
    a("v_add_u32 v%d, %d, v%d" % (V_T, SCB, V_T))
    H = V_EPI + 48
    for i in range(16):
        a("ds_read_b128 %s, v%d offset:%d" % (vr(H + 4 * i), V_T, i * 16))
    LR, LI = PR + 8, PR + 9
    TT = V_T + 4
    for i in range(32):
        if i % 2 == 0:
            a("s_waitcnt lgkmcnt(%d)" % (15 - i // 2))
        if i > 0:
            cfma(a, H + 2 * i, H + 2 * i + 1, LR, LI, H + 2 * i - 2, H + 2 * i - 1, H + 2 * i, H + 2 * i + 1, TT)
    a("v_lshlrev_b32 v%d, 3, v0" % (V_T + 2))
    a("ds_write_b64 v%d, %s offset:%d" % (V_T + 2, vr(H + 62, 2), ESEG))
    P32 = V_EPI + 12
    a("v_mov_b32 v%d, v%d" % (P32, LR))
    a("v_mov_b32 v%d, v%d" % (P32 + 1, LI))
    for i in range(5):
        cmul(a, P32, P32 + 1, P32, P32 + 1, P32, P32 + 1, TT)
    a("s_waitcnt lgkmcnt(0)")
    a("s_barrier")
    AC = V_EPI + 14
    CA = W
    EE = W + 2
    a("v_and_b32 v%d, 31, v0" % (V_T + 2))
    a("v_lshlrev_b32 v%d, 3, v%d" % (V_T + 2, V_T + 2))
    for s in range(8):
        a("ds_read_b64 %s, v%d offset:%d" % (vr(EE + 2 * s, 2), V_T + 2, ESEG + s * 256))
    a("v_mov_b32 v%d, 0" % AC)
    a("v_mov_b32 v%d, 0" % (AC + 1))
    a("v_mov_b32 v%d, 0" % CA)
    a("v_mov_b32 v%d, 0" % (CA + 1))
    a("s_waitcnt lgkmcnt(0)")
    for s in range(8):
        if s > 0:
            a("v_cmp_eq_u32 vcc, %d, v%d" % (s, V_T + 1))
            a("s_nop 1")
            a("v_cndmask_b32 v%d, v%d, v%d, vcc" % (CA, CA, AC))
            a("v_cndmask_b32 v%d, v%d, v%d, vcc" % (CA + 1, CA + 1, AC + 1))
        cfma(a, AC, AC + 1, P32, P32 + 1, AC, AC + 1, EE + 2 * s, EE + 2 * s + 1, TT)
    a("s_lshl_b32 s3, s%d, 10" % S_MI)
    a("s_lshl_b32 s4, s%d, 5" % S_NJ)
    a("s_add_u32 s3, s3, s4")
    a("s_lshl_b32 s3, s3, 3")
    a("s_add_u32 s3, s3, 0x%x" % E_OFF)
    a("v_add_u32 v%d, s3, v%d" % (V_T + 2, V_T + 2))
    a("v_cmp_gt_u32 vcc, 32, v0")
    a("s_and_saveexec_b64 s[4:5], vcc")
    a("buffer_store_dwordx2 %s, v%d, s[%d:%d], 0 offen" % (vr(AC, 2), V_T + 2, SRD_WS, SRD_WS + 3))
    a("s_mov_b64 exec, s[4:5]")
    a("s_lshl_b32 s3, s%d, 18" % S_MI)
    a("s_lshl_b32 s4, s%d, 5" % S_NJ)
    a("s_add_u32 s3, s3, s4")
    a("s_lshl_b32 s3, s3, 3")
    a("s_add_u32 s3, s3, 0x%x" % HLOC_OFF)
    a("v_lshlrev_b32 v%d, 18, v%d" % (V_T + 3, V_T + 1))
    a("v_and_b32 v%d, 31, v0" % (V_T + 2))
    a("v_lshlrev_b32 v%d, 3, v%d" % (V_T + 2, V_T + 2))
    a("v_add_u32 v%d, v%d, v%d" % (V_T + 2, V_T + 2, V_T + 3))
    a("v_add_u32 v%d, s3, v%d" % (V_T + 2, V_T + 2))
    PW = AC
    a("v_mov_b32 v%d, v%d" % (PW, LR))
    a("v_mov_b32 v%d, v%d" % (PW + 1, LI))
    for i in range(32):
        cfma(a, H + 2 * i, H + 2 * i + 1, PW, PW + 1, CA, CA + 1, H + 2 * i, H + 2 * i + 1, TT)
        a("buffer_store_dwordx2 %s, v%d, s[%d:%d], 0 offen" % (vr(H + 2 * i, 2), V_T + 2, SRD_WS, SRD_WS + 3))
        if i < 31:
            cmul(a, PW, PW + 1, PW, PW + 1, LR, LI, TT)
            a("v_add_u32 v%d, 0x2000, v%d" % (V_T + 2, V_T + 2))

    SB = V_T + 8
    a("s_lshl_b32 s3, s%d, 8" % S_MI)
    a("s_lshl_b32 s4, s%d, 6" % S_WAVE)
    a("s_add_u32 s3, s3, s4")
    a("v_and_b32 v%d, 15, v1" % V_T)
    a("v_add_u32 v%d, s3, v%d" % (V_T, V_T))
    a("s_movk_i32 s4, 0x1c00")
    a("v_mul_lo_u32 v%d, s4, v%d" % (V_T, V_T))
    a("v_lshrrev_b32 v%d, 4, v1" % (V_T + 1))
    a("v_lshlrev_b32 v%d, 3, v%d" % (V_T + 1, V_T + 1))
    a("v_add_u32 v%d, v%d, v%d" % (V_T, V_T, V_T + 1))
    a("s_mul_i32 s3, s%d, 224" % S_NJ)
    a("s_add_u32 s3, s3, 0x%x" % HMID_OFF)
    for mt in range(4):
        a("s_add_u32 s4, s3, 0x%x" % (mt * 16 * 7168))
        a("v_add_u32 v%d, s4, v%d" % (SB + mt, V_T))
    a("s_mov_b32 s5, 0x%x" % (LOG2E | 0x80000000))
    X = V_EPI
    cnt = 0
    for t in range(7):
        for mt in range(4):
            base = X + (cnt % 4) * 24
            cnt += 1
            G, U, Tm = base, base + 4, base + 8
            kg, bg = acc(4 + t, mt)
            ku, bu = acc(11 + t, mt)
            for r in range(4):
                a("v_accvgpr_read_b32 v%d, a%d" % (G + r, bg + r))
                if ku == 'a':
                    a("v_accvgpr_read_b32 v%d, a%d" % (U + r, bu + r))
                else:
                    a("v_mov_b32 v%d, v%d" % (U + r, bu + r))
            for p in range(2):
                g0, g1, u0, u1 = G + 2 * p, G + 2 * p + 1, U + 2 * p, U + 2 * p + 1
                t0, t1, t2 = Tm + 4 * p, Tm + 4 * p + 1, Tm + 4 * p + 2
                a("v_cvt_pk_bf16_f32 v%d, v%d, v%d" % (t2, g0, g1))
                a("v_lshlrev_b32 v%d, 16, v%d" % (g0, t2))
                a("v_and_b32 v%d, 0xffff0000, v%d" % (g1, t2))
                a("v_cvt_pk_bf16_f32 v%d, v%d, v%d" % (t2, u0, u1))
                a("v_lshlrev_b32 v%d, 16, v%d" % (u0, t2))
                a("v_and_b32 v%d, 0xffff0000, v%d" % (u1, t2))
                a("v_mul_f32 v%d, s5, v%d" % (t0, g0))
                a("v_mul_f32 v%d, s5, v%d" % (t1, g1))
                a("v_exp_f32 v%d, v%d" % (t0, t0))
                a("v_exp_f32 v%d, v%d" % (t1, t1))
                a("s_nop 0")
                a("v_add_f32 v%d, 1.0, v%d" % (t0, t0))
                a("v_add_f32 v%d, 1.0, v%d" % (t1, t1))
                a("v_rcp_f32 v%d, v%d" % (t0, t0))
                a("v_rcp_f32 v%d, v%d" % (t1, t1))
                a("s_nop 0")
                a("v_mul_f32 v%d, v%d, v%d" % (t0, g0, t0))
                a("v_mul_f32 v%d, v%d, v%d" % (t1, g1, t1))
                a("v_cvt_pk_bf16_f32 v%d, v%d, v%d" % (t2, t0, t1))
                a("v_lshlrev_b32 v%d, 16, v%d" % (t0, t2))
                a("v_and_b32 v%d, 0xffff0000, v%d" % (t1, t2))
                a("v_mul_f32 v%d, v%d, v%d" % (t0, t0, u0))
                a("v_mul_f32 v%d, v%d, v%d" % (t1, t1, u1))
                a("v_cvt_pk_bf16_f32 v%d, v%d, v%d" % (Tm + 12 + p, t0, t1))
            a("buffer_store_dwordx2 %s, v%d, s[%d:%d], 0 offen offset:%d" % (vr(Tm + 12, 2), SB + mt, SRD_WS, SRD_WS + 3, t * 32))
    a.label("K1_done")
    a("s_endpgm")
    return a.text()


DESC = kernel_desc(NAME, 512, 256)
LAUNCH = "; @launch kernel=%s grid=(256,1,1) block=(256,1,1) lds=%d" % (NAME, LDS_BYTES)
```

```python
from common import *

NAME = "k2_kernel"
SRD_WS, SRD_P, SRD_X, SRD_G = 8, 12, 16, 20


def gen():
    a = Asm()
    a("s_cmp_ge_u32 s2, 320")
    a("s_cbranch_scc1 K2_done")
    load_kernargs(a)
    a("s_waitcnt lgkmcnt(0)")
    make_srd(a, SRD_WS, KA['ws'], WS_BYTES)
    a("s_cmp_ge_u32 s2, 256")
    a("s_cbranch_scc1 K2_gate")
    a("s_and_b32 s3, s2, 3")
    a("s_lshr_b32 s4, s2, 2")
    a("s_lshl_b32 s5, s3, 8")
    a("v_add_u32 v1, s5, v0")
    a("v_lshlrev_b32 v2, 1, v1")
    for i, nm in enumerate(['lre', 'lim', 'ldt']):
        make_srd(a, SRD_P, KA[nm], P * 2)
        a("buffer_load_ushort v%d, v2, s[%d:%d], 0 offen" % (4 + i, SRD_P, SRD_P + 3))
        a("s_waitcnt vmcnt(0)")
    a("s_lshl_b32 s6, s4, 18")
    a("s_add_u32 s6, s6, 0x%x" % HLOC_OFF)
    a("v_lshlrev_b32 v3, 3, v1")
    a("v_add_u32 v3, s6, v3")
    H = 64
    for i in range(32):
        a("buffer_load_dwordx2 %s, v3, s[%d:%d], 0 offen" % (vr(H + 2 * i, 2), SRD_WS, SRD_WS + 3))
        if i < 31:
            a("v_add_u32 v3, 0x2000, v3")
    ssm_params(a, 4, 8, 16)
    LR, LI = 8, 9
    TT = 22
    a("v_mov_b32 v24, v8")
    a("v_mov_b32 v25, v9")
    for i in range(5):
        cmul(a, 24, 25, 24, 25, 24, 25, TT)
    a("v_mov_b32 v26, v24")
    a("v_mov_b32 v27, v25")
    for i in range(3):
        cmul(a, 26, 27, 26, 27, 26, 27, TT)
    a("s_lshr_b32 s7, s4, 3")
    a("v_lshlrev_b32 v28, 3, v1")
    a("v_add_u32 v28, 0x%x, v28" % E_OFF)
    a("v_mov_b32 v30, 0")
    a("v_mov_b32 v31, 0")
    a("s_mov_b32 s28, 0")
    a.label("K2_carry")
    a("s_cmp_ge_u32 s28, s7")
    a("s_cbranch_scc1 K2_carry_done")
    a("buffer_load_dwordx2 v[32:33], v28, s[%d:%d], 0 offen" % (SRD_WS, SRD_WS + 3))
    a("s_waitcnt vmcnt(0)")
    cfma(a, 30, 31, 26, 27, 30, 31, 32, 33, TT)
    a("v_add_u32 v28, 0x2000, v28")
    a("s_add_u32 s28, s28, 1")
    a("s_branch K2_carry")
    a.label("K2_carry_done")
    a("v_mov_b32 v34, v8")
    a("v_mov_b32 v35, v9")
    a("s_and_b32 s7, s4, 7")
    a("s_mov_b32 s28, 0")
    a.label("K2_pw")
    a("s_cmp_ge_u32 s28, s7")
    a("s_cbranch_scc1 K2_pw_done")
    cmul(a, 34, 35, 34, 35, 24, 25, TT)
    a("s_add_u32 s28, s28, 1")
    a("s_branch K2_pw")
    a.label("K2_pw_done")
    a("s_lshl_b32 s6, s4, 17")
    a("s_add_u32 s6, s6, 0x%x" % HS_OFF)
    a("v_lshlrev_b32 v3, 1, v1")
    a("v_add_u32 v3, s6, v3")
    a("s_waitcnt vmcnt(0)")
    for i in range(32):
        cfma(a, H + 2 * i, H + 2 * i + 1, 34, 35, 30, 31, H + 2 * i, H + 2 * i + 1, TT)
        a("v_cvt_pk_bf16_f32 v36, v%d, -v%d" % (H + 2 * i, H + 2 * i + 1))
        a("buffer_store_short v36, v3, s[%d:%d], 0 offen" % (SRD_WS, SRD_WS + 3))
        a("buffer_store_short_d16_hi v36, v3, s[%d:%d], 0 offen offset:2048" % (SRD_WS, SRD_WS + 3))
        if i < 31:
            cmul(a, 34, 35, 34, 35, LR, LI, TT)
            a("v_add_u32 v3, 0x1000, v3")
    a("s_endpgm")
    a.label("K2_gate")
    make_srd(a, SRD_X, KA['x'], L * D * 2)
    make_srd(a, SRD_G, KA['gw'], D * 2)
    a("v_and_b32 v1, 63, v0")
    a("v_lshrrev_b32 v2, 6, v0")
    a("s_sub_u32 s3, s2, 256")
    a("s_lshl_b32 s3, s3, 5")
    a("v_lshlrev_b32 v3, 3, v2")
    a("v_add_u32 v3, s3, v3")
    a("v_lshlrev_b32 v4, 4, v1")
    a("buffer_load_dwordx4 v[8:11], v4, s[%d:%d], 0 offen" % (SRD_G, SRD_G + 3))
    a("buffer_load_dwordx4 v[12:15], v4, s[%d:%d], 0 offen offset:1024" % (SRD_G, SRD_G + 3))
    a("v_lshlrev_b32 v5, 11, v3")
    a("v_add_u32 v5, v5, v4")
    for k in range(6):
        a("v_xor_b32 v%d, %d, v1" % (40 + k, 1 << k))
        a("v_lshlrev_b32 v%d, 2, v%d" % (40 + k, 40 + k))
    for row in range(8):
        a("buffer_load_dwordx4 v[16:19], v5, s[%d:%d], 0 offen" % (SRD_X, SRD_X + 3))
        a("buffer_load_dwordx4 v[20:23], v5, s[%d:%d], 0 offen offset:1024" % (SRD_X, SRD_X + 3))
        a("v_mov_b32 v24, 0")
        a("s_waitcnt vmcnt(0)")
        for q in range(8):
            xs, gs = 16 + q, 8 + q
            a("v_lshlrev_b32 v25, 16, v%d" % xs)
            a("v_lshlrev_b32 v26, 16, v%d" % gs)
            a("v_and_b32 v27, 0xffff0000, v%d" % xs)
            a("v_and_b32 v28, 0xffff0000, v%d" % gs)
            a("v_mul_f32 v25, v25, v26")
            a("v_mul_f32 v27, v27, v28")
            a("v_cvt_pk_bf16_f32 v25, v25, v27")
            a("v_lshlrev_b32 v26, 16, v25")
            a("v_and_b32 v27, 0xffff0000, v25")
            a("v_add_f32 v24, v24, v26")
            a("v_add_f32 v24, v24, v27")
        for k in range(6):
            a("ds_bpermute_b32 v25, v%d, v24" % (40 + k))
            a("s_waitcnt lgkmcnt(0)")
            a("v_add_f32 v24, v24, v25")
        a("v_cvt_pk_bf16_f32 v24, v24, v24")
        a("v_lshlrev_b32 v24, 16, v24")
        a("v_mul_f32 v24, 0x%x, v24" % (LOG2E | 0x80000000))
        a("v_exp_f32 v24, v24")
        a("s_nop 0")
        a("v_add_f32 v24, 1.0, v24")
        a("v_rcp_f32 v24, v24")
        a("s_nop 0")
        a("v_cvt_pk_bf16_f32 v24, v24, v24")
        a("v_lshlrev_b32 v24, 16, v24")
        a("v_add_u32 v25, %d, v3" % row)
        a("v_lshlrev_b32 v25, 2, v25")
        a("v_add_u32 v25, 0x%x, v25" % G_OFF)
        a("v_cmp_eq_u32 vcc, 0, v1")
        a("s_and_saveexec_b64 s[4:5], vcc")
        a("buffer_store_dword v24, v25, s[%d:%d], 0 offen" % (SRD_WS, SRD_WS + 3))
        a("s_mov_b64 exec, s[4:5]")
        a("v_add_u32 v5, 0x800, v5")
    a.label("K2_done")
    a("s_endpgm")
    return a.text()


DESC = kernel_desc(NAME, 128, 128)
LAUNCH = "; @launch kernel=%s grid=(320,1,1) block=(256,1,1) lds=0" % NAME
```

```python
from common import *

NAME = "k3_kernel"
WBUF = 36864
SB = 12288
LDS_BYTES = 4 * WBUF

SRD_WS, SRD_C, SRD_W2, SRD_X, SRD_OUT, SRD_DS = 8, 12, 16, 20, 24, 28
S_WAVE, S_MI, S_NJ = 32, 33, 34
S_CNT, S_STEP, S_SA, S_SBO = 35, 36, 37, 38
S_RB, S_WB, S_WBASE = 39, 40, 41
S_T = 42
V_VA = 2
V_VB = 10
V_BX = 14
V_BW = 15
V_RX = 19
V_T = 24
V_XF = 32
V_WF = 96
V_EPI = 128


def gen():
    a = Asm()
    a("s_cmp_ge_u32 s2, 256")
    a("s_cbranch_scc1 K3_done")
    load_kernargs(a)
    a("v_lshrrev_b32 v1, 6, v0")
    a("s_nop 0")
    a("v_readfirstlane_b32 s%d, v1" % S_WAVE)
    a("s_and_b32 s3, s2, 7")
    a("s_lshr_b32 s4, s2, 3")
    a("s_and_b32 s%d, s4, 15" % S_NJ)
    a("s_lshr_b32 s4, s4, 4")
    a("s_lshl_b32 s3, s3, 1")
    a("s_add_u32 s%d, s3, s4" % S_MI)
    a("v_and_b32 v1, 63, v0")
    a("s_waitcnt lgkmcnt(0)")
    make_srd(a, SRD_WS, KA['ws'], WS_BYTES)
    make_srd(a, SRD_W2, KA['w2'], F * D * 2)
    make_srd(a, SRD_X, KA['x'], L * D * 2)
    make_srd(a, SRD_OUT, KA['out'], L * D * 4)
    make_srd(a, SRD_DS, KA['dskip'], D * 2)
    a("s_mov_b32 s%d, 0x%x" % (SRD_C + 2, D * P * 2))
    a("s_mov_b32 s%d, 0x00020000" % (SRD_C + 3))
    a("s_mul_i32 s%d, s%d, %d" % (S_WBASE, S_WAVE, WBUF))
    for i in range(256):
        a("v_accvgpr_write_b32 a%d, 0" % i)
    a("v_lshrrev_b32 v%d, 4, v1" % V_T)
    a("v_lshrrev_b32 v%d, 2, v1" % (V_T + 1))
    a("v_and_b32 v%d, 2, v%d" % (V_T + 1, V_T + 1))
    a("v_xor_b32 v%d, v%d, v%d" % (V_T, V_T, V_T + 1))
    a("v_lshlrev_b32 v%d, 4, v%d" % (V_T, V_T))
    a("v_and_b32 v%d, 15, v1" % (V_T + 1))
    a("v_lshlrev_b32 v%d, 6, v%d" % (V_T + 1, V_T + 1))
    a("v_add_u32 v%d, v%d, v%d" % (V_BX, V_T, V_T + 1))
    a("v_lshrrev_b32 v%d, 4, v1" % V_T)
    a("v_lshlrev_b32 v%d, 2, v%d" % (V_T, V_T))
    a("v_and_b32 v%d, 15, v1" % (V_T + 1))
    a("v_lshrrev_b32 v%d, 2, v%d" % (V_T + 1, V_T + 1))
    a("v_add_u32 v%d, v%d, v%d" % (V_T, V_T, V_T + 1))
    a("v_lshrrev_b32 v%d, 1, v%d" % (V_T + 1, V_T))
    a("v_and_b32 v%d, 3, v%d" % (V_T + 1, V_T + 1))
    a("v_lshlrev_b32 v%d, 7, v%d" % (V_T, V_T))
    a("v_and_b32 v%d, 3, v1" % (V_T + 2))
    a("v_lshlrev_b32 v%d, 3, v%d" % (V_T + 2, V_T + 2))
    a("v_add_u32 v%d, v%d, v%d" % (V_T, V_T, V_T + 2))
    a("v_add_u32 v%d, 0x2000, v%d" % (V_T, V_T))
    for nt in range(4):
        a("v_xor_b32 v%d, %d, v%d" % (V_T + 2, nt, V_T + 1))
        a("v_lshlrev_b32 v%d, 5, v%d" % (V_T + 2, V_T + 2))
        a("v_add_u32 v%d, v%d, v%d" % (V_BW + nt, V_T, V_T + 2))

    def lane_rowpart(pitch_shift=None, pitch=None):
        a("v_lshrrev_b32 v%d, 5, v1" % V_T)
        a("v_lshlrev_b32 v%d, 1, v%d" % (V_T, V_T))
        a("v_and_b32 v%d, 3, v1" % (V_T + 1))
        a("v_xor_b32 v%d, v%d, v%d" % (V_T, V_T, V_T + 1))
        a("v_lshlrev_b32 v%d, 4, v%d" % (V_T, V_T))
        a("v_lshrrev_b32 v%d, 2, v1" % (V_T + 1))
        a("s_mov_b32 s%d, %d" % (S_T, pitch))
        a("v_mul_lo_u32 v%d, s%d, v%d" % (V_T + 1, S_T, V_T + 1))
        a("v_add_u32 v%d, v%d, v%d" % (V_T, V_T, V_T + 1))

    def dma(seg, idx, tag):
        if idx < 8:
            if idx % 4 == 0:
                a("s_add_u32 m0, s%d, %d" % (S_WB, (idx // 4) * 4096))
                a("s_nop 0")
            a.vm("buffer_load_dwordx4 v%d, s[%d:%d], s%d offen offset:%d lds" %
                 (V_VA + idx, SRD_WS, SRD_WS + 3, S_SA, (idx % 4) * 1024), tag)
        else:
            i = idx - 8
            if i == 0:
                a("s_add_u32 m0, s%d, 8192" % S_WB)
                a("s_nop 0")
            srd = SRD_C if seg == 0 else SRD_W2
            a.vm("buffer_load_dwordx4 v%d, s[%d:%d], s%d offen offset:%d lds" %
                 (V_VB + i, srd, srd + 3, S_SBO, i * 1024), tag)

    def advance_dma(seg):
        a("s_add_u32 s%d, s%d, 1" % (S_STEP, S_STEP))
        a("s_lshl_b32 s%d, s%d, 6" % (S_SA, S_STEP))
        if seg == 0:
            a("s_and_b32 s%d, s%d, 31" % (S_SBO, S_STEP))
            a("s_lshl_b32 s%d, s%d, 6" % (S_SBO, S_SBO))
            a("s_cmp_lt_u32 s%d, 32" % S_STEP)
            a("s_cselect_b32 s%d, s%d, s%d" % (SRD_C, KA['cre'], KA['cim']))
            a("s_cselect_b32 s%d, s%d, s%d" % (SRD_C + 1, KA['cre'] + 1, KA['cim'] + 1))
            a("s_and_b32 s%d, s%d, 0xffff" % (SRD_C + 1, SRD_C + 1))
        else:
            a("s_lshl_b32 s%d, s%d, 16" % (S_SBO, S_STEP))
        rot(S_WB)

    def rot(s):
        a("s_add_u32 s%d, s%d, %d" % (s, s, SB))
        a("s_add_u32 s%d, s%d, %d" % (S_T, S_WBASE, 3 * SB))
        a("s_cmp_ge_u32 s%d, s%d" % (s, S_T))
        a("s_cselect_b32 s%d, s%d, s%d" % (s, S_WBASE, s))

    def set_read_addrs(seg):
        a("v_add_u32 v%d, s%d, v%d" % (V_RX, S_RB, V_BX))
        if seg == 1:
            for nt in range(4):
                a("v_add_u32 v%d, s%d, v%d" % (V_RX + 1 + nt, S_RB, V_BW + nt))

    def frag_reads(seg, par):
        out = []
        for mt in range(8):
            out.append(lambda mt=mt: a.lds("ds_read_b128 %s, v%d offset:%d" % (vr(V_XF + par * 32 + mt * 4), V_RX, mt * 1024), "F%d" % par))
        for nt in range(4):
            if seg == 0:
                out.append(lambda nt=nt: a.lds("ds_read_b128 %s, v%d offset:%d" % (vr(V_WF + par * 16 + nt * 4), V_RX, 8192 + nt * 1024), "F%d" % par))
            else:
                for h in range(2):
                    out.append(lambda nt=nt, h=h: a.lds("ds_read_b64_tr_b16 %s, v%d offset:%d" % (vr(V_WF + par * 16 + nt * 4 + 2 * h, 2), V_RX + 1 + nt, h * 2048), "F%d" % par))
        return out

    def segment(seg):
        lab = "K3_seg%d" % seg
        accb = 0 if seg == 0 else 128
        a("s_cmp_eq_u32 s%d, 0" % S_CNT)
        a("s_cbranch_scc1 %s_end" % lab)
        if seg == 0:
            lane_rowpart(pitch=4096)
            a("s_lshl_b32 s3, s%d, 19" % S_MI)
            a("s_add_u32 s3, s3, 0x%x" % HS_OFF)
            for i in range(8):
                a("s_add_u32 s4, s3, 0x%x" % (i * 16 * 4096 - (i % 4) * 1024))
                a("v_add_u32 v%d, s4, v%d" % (V_VA + i, V_T))
            lane_rowpart(pitch=2048)
            a("s_lshl_b32 s3, s%d, 17" % S_NJ)
            for i in range(4):
                a("s_add_u32 s4, s3, 0x%x" % (i * 16 * 2048 - i * 1024))
                a("v_add_u32 v%d, s4, v%d" % (V_VB + i, V_T))
        else:
            lane_rowpart(pitch=7168)
            a("s_mul_i32 s3, s%d, 0x%x" % (S_MI, 128 * 7168))
            a("s_add_u32 s3, s3, 0x%x" % HMID_OFF)
            for i in range(8):
                a("s_add_u32 s4, s3, 0x%x" % (i * 16 * 7168 - (i % 4) * 1024))
                a("v_add_u32 v%d, s4, v%d" % (V_VA + i, V_T))
            for i in range(4):
                a("v_lshrrev_b32 v%d, 3, v1" % V_T)
                a("v_add_u32 v%d, %d, v%d" % (V_T, 8 * i, V_T))
                a("v_lshrrev_b32 v%d, 2, v%d" % (V_T + 1, V_T))
                a("v_and_b32 v%d, 3, v%d" % (V_T + 1, V_T + 1))
                a("v_lshlrev_b32 v%d, 3, v%d" % (V_T + 1, V_T + 1))
                a("v_and_b32 v%d, 3, v%d" % (V_T + 2, V_T))
                a("v_add_u32 v%d, v%d, v%d" % (V_T + 1, V_T + 1, V_T + 2))
                a("v_add_u32 v%d, %d, v%d" % (V_T + 1, (i >> 1) * 4, V_T + 1))
                a("v_lshlrev_b32 v%d, 11, v%d" % (V_T + 1, V_T + 1))
                a("v_lshrrev_b32 v%d, 1, v%d" % (V_T + 2, V_T))
                a("v_and_b32 v%d, 3, v%d" % (V_T + 2, V_T + 2))
                a("v_lshrrev_b32 v%d, 1, v1" % (V_T + 3))
                a("v_and_b32 v%d, 3, v%d" % (V_T + 3, V_T + 3))
                a("v_xor_b32 v%d, v%d, v%d" % (V_T + 2, V_T + 2, V_T + 3))
                a("v_lshlrev_b32 v%d, 5, v%d" % (V_T + 2, V_T + 2))
                a("v_and_b32 v%d, 1, v1" % (V_T + 3))
                a("v_lshlrev_b32 v%d, 4, v%d" % (V_T + 3, V_T + 3))
                a("v_add3_u32 v%d, v%d, v%d, v%d" % (V_T + 1, V_T + 1, V_T + 2, V_T + 3))
                a("s_lshl_b32 s3, s%d, 7" % S_NJ)
                a("s_sub_u32 s3, s3, %d" % (i * 1024))
                a("v_add_u32 v%d, s3, v%d" % (V_VB + i, V_T + 1))
        a("s_sub_u32 s%d, s%d, 1" % (S_STEP, S_STEP))
        a("s_mov_b32 s%d, s%d" % (S_WB, S_WBASE))
        a("s_mov_b32 s%d, s%d" % (S_RB, S_WBASE))
        advance_dma(seg)
        a("s_mov_b32 s%d, s%d" % (S_WB, S_WBASE))
        for st in range(3):
            for i in range(12):
                dma(seg, i, "D%d" % (st % 2))
            advance_dma(seg)
        a.wait_vm("D0") if False else None
        a("s_waitcnt vmcnt(24)")
        a.vq = a.vq[12:]
        set_read_addrs(seg)
        for f in frag_reads(seg, 0):
            f()
        rot(S_RB)
        lq0 = list(a.lq)
        a.label(lab + "_loop")
        for par in range(2):
            a("s_waitcnt vmcnt(12)")
            a.vq = a.vq[12:]
            set_read_addrs(seg)
            a.wait_lds("F%d" % par)
            reads = frag_reads(seg, 1 - par)
            n = 0
            for nt in range(4):
                for mt in range(8):
                    if n < len(reads):
                        reads[n]()
                    if 12 <= n < 24:
                        dma(seg, n - 12, "Dx")
                    ab = accb + (nt * 8 + mt) * 4
                    a("v_mfma_f32_16x16x32_bf16 %s, %s, %s, %s" % (ar(ab), vr(V_WF + par * 16 + nt * 4), vr(V_XF + par * 32 + mt * 4), ar(ab)))
                    n += 1
            advance_dma(seg)
            rot(S_RB)
        assert a.lq == lq0, (a.lq, lq0)
        a("s_sub_u32 s%d, s%d, 2" % (S_CNT, S_CNT))
        a("s_cmp_gt_u32 s%d, 0" % S_CNT)
        a("s_cbranch_scc1 %s_loop" % lab)
        a.wait_vm_all()
        a.wait_lds_all()
        a.label(lab + "_end")

    a("s_cmp_eq_u32 s%d, 0" % S_WAVE)
    a("s_cselect_b32 s%d, 44, 0" % S_CNT)
    a("s_cmp_eq_u32 s%d, 1" % S_WAVE)
    a("s_cselect_b32 s%d, 20, s%d" % (S_CNT, S_CNT))
    a("s_cselect_b32 s%d, 44, 0" % S_STEP)
    segment(0)
    a("s_cmp_eq_u32 s%d, 0" % S_WAVE)
    a("s_cselect_b32 s%d, 0, 44" % S_CNT)
    a("s_cmp_eq_u32 s%d, 1" % S_WAVE)
    a("s_cselect_b32 s%d, 24, s%d" % (S_CNT, S_CNT))
    a("s_cmp_eq_u32 s%d, 3" % S_WAVE)
    a("s_cselect_b32 s%d, 68, 24" % S_STEP)
    a("s_cmp_lt_u32 s%d, 2" % S_WAVE)
    a("s_cselect_b32 s%d, 0, s%d" % (S_STEP, S_STEP))
    segment(1)
    a("s_barrier")
    a("s_nop 7")
    a("v_lshlrev_b32 v%d, 4, v1" % V_T)

    def slot(st, w, nt, mt):
        mtp = mt if mt < 2 * w else mt - 2
        return st * 24576 + (nt * 6 + mtp) * 1024

    sets_of = {0: [(0, 0)], 1: [(1, 0), (2, 128)], 2: [(3, 128)], 3: [(4, 128)]}
    for w in range(4):
        a("s_cmp_lg_u32 s%d, %d" % (S_WAVE, w))
        a("s_cbranch_scc1 K3_wr_skip%d" % w)
        cnt = 0
        for (st, ab) in sets_of[w]:
            for nt in range(4):
                for mt in range(8):
                    if mt in (2 * w, 2 * w + 1):
                        continue
                    tmp = V_EPI + (cnt % 8) * 4
                    cnt += 1
                    for r in range(4):
                        a("v_accvgpr_read_b32 v%d, a%d" % (tmp + r, ab + (nt * 8 + mt) * 4 + r))
                    off = slot(st, w, nt, mt)
                    hi, lo = off // 65536, off % 65536
                    if hi:
                        a("v_add_u32 v%d, 0x%x, v%d" % (V_T + 1, hi * 65536, V_T))
                        a("ds_write_b128 v%d, %s offset:%d" % (V_T + 1, vr(tmp), lo))
                    else:
                        a("ds_write_b128 v%d, %s offset:%d" % (V_T, vr(tmp), lo))
        a.label("K3_wr_skip%d" % w)
    a("s_waitcnt lgkmcnt(0)")
    a("s_barrier")
    a("v_add_u32 v%d, 0x10000, v%d" % (V_T + 1, V_T))
    VM, VN = V_T + 2, V_T + 3
    a("s_lshl_b32 s3, s%d, 7" % S_MI)
    a("s_lshl_b32 s4, s%d, 5" % S_WAVE)
    a("s_add_u32 s3, s3, s4")
    a("v_and_b32 v%d, 15, v1" % VM)
    a("v_add_u32 v%d, s3, v%d" % (VM, VM))
    a("s_lshl_b32 s3, s%d, 6" % S_NJ)
    a("v_lshrrev_b32 v%d, 4, v1" % VN)
    a("v_lshlrev_b32 v%d, 2, v%d" % (VN, VN))
    a("v_add_u32 v%d, s3, v%d" % (VN, VN))
    GG = V_EPI
    DS = V_EPI + 2
    XX = V_EPI + 10
    a("v_lshlrev_b32 v%d, 2, v%d" % (V_T + 4, VM))
    a("v_add_u32 v%d, 0x%x, v%d" % (V_T + 4, G_OFF, V_T + 4))
    a("buffer_load_dword v%d, v%d, s[%d:%d], 0 offen" % (GG, V_T + 4, SRD_WS, SRD_WS + 3))
    a("buffer_load_dword v%d, v%d, s[%d:%d], 0 offen offset:64" % (GG + 1, V_T + 4, SRD_WS, SRD_WS + 3))
    a("v_lshlrev_b32 v%d, 1, v%d" % (V_T + 4, VN))
    for nt in range(4):
        a("buffer_load_dwordx2 %s, v%d, s[%d:%d], 0 offen offset:%d" % (vr(DS + 2 * nt, 2), V_T + 4, SRD_DS, SRD_DS + 3, nt * 32))
    a("v_lshlrev_b32 v%d, 11, v%d" % (V_T + 5, VM))
    a("v_add_u32 v%d, v%d, v%d" % (V_T + 4, V_T + 4, V_T + 5))
    a("v_add_u32 v%d, 0x8000, v%d" % (V_T + 5, V_T + 4))
    for q in range(2):
        for nt in range(4):
            a("buffer_load_dwordx2 %s, v%d, s[%d:%d], 0 offen offset:%d" % (vr(XX + (q * 4 + nt) * 2, 2), V_T + 4 + q, SRD_X, SRD_X + 3, nt * 32))
    a("v_lshlrev_b32 v%d, 12, v%d" % (V_T + 6, VM))
    a("v_lshlrev_b32 v%d, 2, v%d" % (V_T + 7, VN))
    a("v_add_u32 v%d, v%d, v%d" % (V_T + 6, V_T + 6, V_T + 7))
    a("v_add_u32 v%d, 0x10000, v%d" % (V_T + 7, V_T + 6))
    AS = V_EPI + 32
    BS = V_EPI + 64
    TMP = V_EPI + 96
    for w in range(4):
        a("s_cmp_lg_u32 s%d, %d" % (S_WAVE, w))
        a("s_cbranch_scc1 K3_rd_skip%d" % w)
        for q in range(2):
            mt = 2 * w + q
            for nt in range(4):
                ti = q * 4 + nt
                for (dst, srcs) in ((AS, [(0, 0, 0), (1, 1, 0)]), (BS, [(2, 1, 128), (3, 2, 128), (4, 3, 128)])):
                    d = dst + ti * 4
                    first = True
                    pend = []
                    for (st, wr, ab) in srcs:
                        if wr == w:
                            continue
                        off = slot(st, wr, nt, mt)
                        base = V_T if off < 65536 else V_T + 1
                        tgt = d if first else TMP + len(pend) * 4
                        a("ds_read_b128 %s, v%d offset:%d" % (vr(tgt), base, off % 65536))
                        if not first:
                            pend.append(tgt)
                        first = False
                    own = [(st, wr, ab) for (st, wr, ab) in srcs if wr == w]
                    a("s_waitcnt lgkmcnt(0)")
                    for tgt in pend:
                        for r in range(4):
                            a("v_add_f32 v%d, v%d, v%d" % (d + r, d + r, tgt + r))
                    for (st, wr, ab) in own:
                        for r in range(4):
                            a("v_accvgpr_read_b32 v%d, a%d" % (TMP + r, ab + (nt * 8 + mt) * 4 + r))
                        for r in range(4):
                            a("v_add_f32 v%d, v%d, v%d" % (d + r, d + r, TMP + r))
        a.label("K3_rd_skip%d" % w)
    a("s_waitcnt vmcnt(0)")
    for q in range(2):
        g = GG + q
        a("v_sub_f32 v%d, 1.0, v%d" % (TMP, g))
        a("v_cvt_pk_bf16_f32 v%d, v%d, v%d" % (TMP, TMP, TMP))
        a("v_lshlrev_b32 v%d, 16, v%d" % (TMP, TMP))
        for nt in range(4):
            ti = q * 4 + nt
            xa = XX + ti * 2
            da = DS + nt * 2
            o = AS + ti * 4
            b = BS + ti * 4
            for p in range(2):
                t0, t1, t2, t3 = TMP + 1, TMP + 2, TMP + 3, TMP + 4
                a("v_lshlrev_b32 v%d, 16, v%d" % (t0, xa + p))
                a("v_and_b32 v%d, 0xffff0000, v%d" % (t1, xa + p))
                a("v_lshlrev_b32 v%d, 16, v%d" % (t2, da + p))
                a("v_and_b32 v%d, 0xffff0000, v%d" % (t3, da + p))
                a("v_mul_f32 v%d, v%d, v%d" % (t0, t0, t2))
                a("v_mul_f32 v%d, v%d, v%d" % (t1, t1, t3))
                a("v_cvt_pk_bf16_f32 v%d, v%d, v%d" % (t2, t0, t1))
                a("v_lshlrev_b32 v%d, 16, v%d" % (t0, t2))
                a("v_and_b32 v%d, 0xffff0000, v%d" % (t1, t2))
                a("v_fma_f32 v%d, 2.0, v%d, v%d" % (o + 2 * p, o + 2 * p, t0))
                a("v_fma_f32 v%d, 2.0, v%d, v%d" % (o + 2 * p + 1, o + 2 * p + 1, t1))
                a("v_cvt_pk_bf16_f32 v%d, v%d, v%d" % (t2, b + 2 * p, b + 2 * p + 1))
                a("v_lshlrev_b32 v%d, 16, v%d" % (t0, t2))
                a("v_and_b32 v%d, 0xffff0000, v%d" % (t1, t2))
                a("v_mul_f32 v%d, v%d, v%d" % (t0, TMP, t0))
                a("v_mul_f32 v%d, v%d, v%d" % (t1, TMP, t1))
                a("v_cvt_pk_bf16_f32 v%d, v%d, v%d" % (t2, t0, t1))
                a("v_lshlrev_b32 v%d, 16, v%d" % (t0, t2))
                a("v_and_b32 v%d, 0xffff0000, v%d" % (t1, t2))
                a("v_mul_f32 v%d, v%d, v%d" % (o + 2 * p, g, o + 2 * p))
                a("v_mul_f32 v%d, v%d, v%d" % (o + 2 * p + 1, g, o + 2 * p + 1))
                a("v_add_f32 v%d, v%d, v%d" % (o + 2 * p, o + 2 * p, t0))
                a("v_add_f32 v%d, v%d, v%d" % (o + 2 * p + 1, o + 2 * p + 1, t1))
            a("buffer_store_dwordx4 %s, v%d, s[%d:%d], 0 offen offset:%d" % (vr(o), V_T + 6 + q, SRD_OUT, SRD_OUT + 3, nt * 64))
    a.label("K3_done")
    a("s_endpgm")
    return a.text()


DESC = kernel_desc(NAME, 512, 256)
LAUNCH = "; @launch kernel=%s grid=(256,1,1) block=(256,1,1) lds=%d" % (NAME, LDS_BYTES)
```

```python
import sys, importlib
sys.path.insert(0, 'gen')
import k1, k3
from asmlib import *
mods = [k1, k3]
ref = open('gated_mix__ssm_conv_s5__glu_gated_swiglu__prompt.s.ref').read().splitlines()
hdr = [l for l in ref if l.startswith(';') and '@launch' not in l and 'Override launch' not in l and 'grid=ceil' not in l]
out = "\n".join(hdr) + "\n" + "\n".join(m.LAUNCH for m in mods) + "\n"
out += '.amdgcn_target "amdgcn-amd-amdhsa--gfx950"\n.text\n'
for m in mods:
    out += kernel_header(m.NAME) + m.gen()
out += '.section .rodata,"a"\n'
for m in mods:
    out += m.DESC
dst = sys.argv[1] if len(sys.argv) > 1 else 'gated_mix__ssm_conv_s5__glu_gated_swiglu__prompt.s'
open(dst, 'w').write(out)
print("wrote", dst, len(out))
```

```python
from asmlib import *

L, D, P, F = 2048, 1024, 1024, 3584
HMID_OFF = 0
HLOC_OFF = 0x1000000
E_OFF = 0x2000000
HS_OFF = 0x2100000
G_OFF = 0x2900000
WS_BYTES = 0x10000000

KA = dict(x=64, lre=66, lim=68, bre=70, bim=72, cre=74, cim=76, ldt=78, dskip=80, bx=82, w1=84, w3=86,
          w2=88, gw=90, out=92, dbg=94, ws=96)


def load_kernargs(a):
    a("s_load_dwordx16 s[64:79], s[0:1], 0")
    a("s_load_dwordx16 s[80:95], s[0:1], 64")
    a("s_load_dwordx2 s[96:97], s[0:1], 128")


def make_srd(a, dst, ptr, nbytes):
    a("s_mov_b32 s%d, s%d" % (dst, ptr))
    a("s_and_b32 s%d, s%d, 0xffff" % (dst + 1, ptr + 1))
    a("s_mov_b32 s%d, 0x%x" % (dst + 2, nbytes))
    a("s_mov_b32 s%d, 0x00020000" % (dst + 3))


LOG2E = 0x3fb8aa3b
INV2PI = 0x3e22f983


def ssm_params(a, raw, out, t):
    lre, lim, dt, t0, t1, t2 = ["v%d" % (t + i) for i in range(6)]
    o = ["v%d" % (out + i) for i in range(4)]
    a("v_lshlrev_b32 %s, 16, v%d" % (lre, raw))
    a("v_lshlrev_b32 %s, 16, v%d" % (lim, raw + 1))
    a("v_lshlrev_b32 %s, 16, v%d" % (dt, raw + 2))
    a("v_mul_f32 %s, 0x%x, %s" % (dt, LOG2E, dt))
    a("v_exp_f32 %s, %s" % (dt, dt))
    a("s_nop 0")
    a("v_cvt_pk_bf16_f32 %s, %s, %s" % (dt, dt, dt))
    a("v_lshlrev_b32 %s, 16, %s" % (dt, dt))
    a("v_mul_f32 %s, %s, %s" % (t0, dt, lre))
    a("v_mul_f32 %s, %s, %s" % (t1, dt, lim))
    a("v_mul_f32 %s, 0x%x, %s" % (t0, LOG2E, t0))
    a("v_exp_f32 %s, %s" % (t0, t0))
    a("v_mul_f32 %s, 0x%x, %s" % (t1, INV2PI, t1))
    a("v_cos_f32 %s, %s" % (t2, t1))
    a("v_sin_f32 %s, %s" % (t1, t1))
    a("s_nop 0")
    a("v_mul_f32 %s, %s, %s" % (o[0], t0, t2))
    a("v_mul_f32 %s, %s, %s" % (o[1], t0, t1))
    a("v_add_f32 %s, -1.0, %s" % (t0, o[0]))
    a("v_mul_f32 %s, %s, %s" % (t1, lre, lre))
    a("v_fma_f32 %s, %s, %s, %s" % (t1, lim, lim, t1))
    a("v_rcp_f32 %s, %s" % (t1, t1))
    a("v_mul_f32 %s, %s, %s" % (t2, t0, lre))
    a("v_fma_f32 %s, %s, %s, %s" % (t2, o[1], lim, t2))
    a("v_mul_f32 %s, %s, %s" % (o[2], t2, t1))
    a("v_mul_f32 %s, %s, %s" % (t2, o[1], lre))
    a("v_fma_f32 %s, -%s, %s, %s" % (t2, t0, lim, t2))
    a("v_mul_f32 %s, %s, %s" % (o[3], t2, t1))


def cmul(a, dr, di, ar_, ai, br, bi, t):
    a("v_mul_f32 v%d, v%d, v%d" % (t, ar_, br))
    a("v_fma_f32 v%d, -v%d, v%d, v%d" % (t, ai, bi, t))
    a("v_mul_f32 v%d, v%d, v%d" % (t + 1, ar_, bi))
    a("v_fma_f32 v%d, v%d, v%d, v%d" % (di, ai, br, t + 1))
    a("v_mov_b32 v%d, v%d" % (dr, t))


def cfma(a, dr, di, ar_, ai, br, bi, cr, ci, t):
    a("v_fma_f32 v%d, v%d, v%d, v%d" % (t, ar_, br, cr))
    a("v_fma_f32 v%d, v%d, v%d, v%d" % (t + 1, ar_, bi, ci))
    a("v_fma_f32 v%d, -v%d, v%d, v%d" % (t, ai, bi, t))
    a("v_fma_f32 v%d, v%d, v%d, v%d" % (di, ai, br, t + 1))
    a("v_mov_b32 v%d, v%d" % (dr, t))


TS_OFF = 0x3000000
import os
STAMP = os.environ.get("STAMP", "0") == "1"


def stamp(a, idx, srd_ws, kid):
    if not STAMP:
        return
    a("s_memtime s[98:99]")
    a("s_waitcnt lgkmcnt(0)")
    a("s_lshl_b32 s99, s2, 6")
    a("s_add_u32 s99, s99, 0x%x" % (TS_OFF + kid * 0x10000 + idx * 4))
    a("v_mov_b32 v22, s98")
    a("v_mov_b32 v23, s99")
    a("v_cmp_eq_u32 vcc, 0, v0")
    a("s_and_saveexec_b64 s[100:101], vcc")
    a("buffer_store_dword v22, v23, s[%d:%d], 0 offen" % (srd_ws, srd_ws + 3))
    a("s_mov_b64 exec, s[100:101]")
```

```python
from common import *

NAME = "k1_kernel"
BUF = 69632
XOFF, BMOFF, WOFF = 0, 32768, 40960
WMAT = 14336
LDS_BYTES = 2 * BUF

SRD_X, SRD_BM, SRD_W1, SRD_W3, SRD_WS, SRD_P = 8, 12, 16, 20, 24, 28
S_SX, S_SW, S_CNT, S_WAVE, S_MI, S_NJ = 40, 41, 42, 43, 44, 45
S_MASK = 46
S_M0X, S_M0B, S_M0W = 48, 49, 50
S_GROW = 51
SRD_G = 52
V_VX = 2
V_VB = 10
V_VW = 12
V_VA = 16
V_VBM = 20
V_VWB = 24
V_T = 32
V_A = 48
V_RING = 80
NSLOT = 6
PD = 4
V_EPI = 104
V_RAW = 214
ACCV = 224


def acc(j, mt):
    idx = j * 4 + mt
    if idx < 64:
        return ("a", idx * 4)
    return ("v", ACCV + (idx - 64) * 4)


def accs(j, mt):
    k, b = acc(j, mt)
    return "%s[%d:%d]" % (k, b, b + 3)


def gen():
    a = Asm()
    a("s_cmp_ge_u32 s2, 256")
    a("s_cbranch_scc1 K1_done")
    load_kernargs(a)
    a("v_lshrrev_b32 v1, 6, v0")
    a("s_nop 0")
    a("v_readfirstlane_b32 s%d, v1" % S_WAVE)
    a("s_and_b32 s%d, s2, 7" % S_NJ)
    a("s_lshl_b32 s%d, s%d, 2" % (S_NJ, S_NJ))
    a("s_lshr_b32 s3, s2, 3")
    a("s_and_b32 s3, s3, 3")
    a("s_add_u32 s%d, s%d, s3" % (S_NJ, S_NJ))
    a("s_lshr_b32 s%d, s2, 5" % S_MI)
    a("v_and_b32 v1, 63, v0")
    a("s_waitcnt lgkmcnt(0)")
    make_srd(a, SRD_X, KA['x'], L * D * 2)
    make_srd(a, SRD_W1, KA['w1'], D * F * 2)
    make_srd(a, SRD_W3, KA['w3'], D * F * 2)
    make_srd(a, SRD_WS, KA['ws'], WS_BYTES)
    stamp(a, 0, SRD_WS, 0)
    a("s_cmp_lt_u32 s%d, 2" % S_WAVE)
    a("s_cselect_b32 s%d, s%d, s%d" % (SRD_BM, KA['bre'], KA['bim']))
    a("s_cselect_b32 s%d, s%d, s%d" % (SRD_BM + 1, KA['bre'] + 1, KA['bim'] + 1))
    a("s_and_b32 s%d, s%d, 0xffff" % (SRD_BM + 1, SRD_BM + 1))
    a("s_mov_b32 s%d, 0x%x" % (SRD_BM + 2, P * D * 2))
    a("s_mov_b32 s%d, 0x00020000" % (SRD_BM + 3))
    a("v_lshrrev_b32 v%d, 3, v1" % (V_T + 1))
    a("v_and_b32 v%d, 7, v1" % V_T)
    a("v_xor_b32 v%d, v%d, v%d" % (V_T, V_T, V_T + 1))
    a("v_lshlrev_b32 v%d, 4, v%d" % (V_T, V_T))
    a("v_lshlrev_b32 v%d, 11, v%d" % (V_T + 1, V_T + 1))
    a("v_add_u32 v%d, v%d, v%d" % (V_T, V_T, V_T + 1))
    a("s_lshl_b32 s3, s%d, 8" % S_MI)
    a("s_lshl_b32 s4, s%d, 6" % S_WAVE)
    a("s_add_u32 s3, s3, s4")
    a("s_lshl_b32 s3, s3, 11")
    for i in range(8):
        a("s_add_u32 s4, s3, 0x%x" % (i * 8 * 2048 - (i % 4) * 1024))
        a("v_add_u32 v%d, s4, v%d" % (V_VX + i, V_T))
    a("s_lshl_b32 s3, s%d, 5" % S_NJ)
    a("s_and_b32 s4, s%d, 1" % S_WAVE)
    a("s_lshl_b32 s4, s4, 4")
    a("s_add_u32 s3, s3, s4")
    a("s_lshl_b32 s3, s3, 11")
    for i in range(2):
        a("s_add_u32 s4, s3, 0x%x" % (i * 8 * 2048 - i * 1024))
        a("v_add_u32 v%d, s4, v%d" % (V_VB + i, V_T))
    a("v_mul_u32_u24 v%d, 37, v1" % V_T)
    a("v_lshrrev_b32 v%d, 9, v%d" % (V_T, V_T))
    a("v_mul_u32_u24 v%d, 14, v%d" % (V_T + 1, V_T))
    a("v_sub_u32 v%d, v1, v%d" % (V_T + 1, V_T + 1))
    a("v_lshlrev_b32 v%d, 4, v%d" % (V_T + 1, V_T + 1))
    a("s_movk_i32 s4, 0x1c00")
    a("v_mul_lo_u32 v%d, s4, v%d" % (V_T, V_T))
    a("v_add_u32 v%d, v%d, v%d" % (V_T, V_T, V_T + 1))
    a("s_mul_i32 s3, s%d, 224" % S_NJ)
    a("s_lshr_b32 s5, s%d, 1" % S_WAVE)
    a("s_lshl_b32 s5, s5, 5")
    a("s_and_b32 s6, s%d, 1" % S_WAVE)
    a("s_lshl_b32 s6, s6, 2")
    a("s_add_u32 s5, s5, s6")
    a("s_mul_i32 s5, s5, 7168")
    a("s_add_u32 s5, s5, s3")
    for t in range(4):
        a("s_add_u32 s6, s5, %d" % (t * 8 * 7168 - t * 896))
        a("v_add_u32 v%d, s6, v%d" % (V_VW + t, V_T))
    a("s_mov_b32 s%d, -1" % S_MASK)
    a("s_mov_b32 s%d, 0x00ffffff" % (S_MASK + 1))
    a("s_lshl_b32 s%d, s%d, 13" % (S_M0X, S_WAVE))
    a("s_lshl_b32 s%d, s%d, 11" % (S_M0B, S_WAVE))
    a("s_add_u32 s%d, s%d, %d" % (S_M0B, S_M0B, BMOFF))
    a("s_mul_i32 s%d, s%d, 3584" % (S_M0W, S_WAVE))
    a("s_add_u32 s%d, s%d, %d" % (S_M0W, S_M0W, WOFF))
    a("s_mov_b32 s%d, 0" % S_SX)
    a("s_mov_b32 s%d, 0" % S_SW)

    def dma(idx, b):
        tag = "dma%d" % b
        if idx < 8:
            if idx % 4 == 0:
                a("s_add_u32 m0, s%d, %d" % (S_M0X, b * BUF + (idx // 4) * 4096))
                a("s_nop 0")
            a.vm("buffer_load_dwordx4 v%d, s[%d:%d], s%d offen offset:%d lds" % (V_VX + idx, SRD_X, SRD_X + 3, S_SX, (idx % 4) * 1024), tag)
        elif idx < 10:
            if idx == 8:
                a("s_add_u32 m0, s%d, %d" % (S_M0B, b * BUF))
                a("s_nop 0")
            a.vm("buffer_load_dwordx4 v%d, s[%d:%d], s%d offen offset:%d lds" % (V_VB + idx - 8, SRD_BM, SRD_BM + 3, S_SX, (idx - 8) * 1024), tag)
        else:
            mat, t = (idx - 10) // 4, (idx - 10) % 4
            srd = SRD_W1 if mat == 0 else SRD_W3
            if t == 0:
                a("s_add_u32 m0, s%d, %d" % (S_M0W, b * BUF + mat * WMAT))
            a("s_mov_b64 exec, s[%d:%d]" % (S_MASK, S_MASK + 1))
            a.vm("buffer_load_dwordx4 v%d, s[%d:%d], s%d offen offset:%d lds" % (V_VW + t, srd, srd + 3, S_SW, t * 896), tag)
            a("s_mov_b64 exec, -1")
        if idx == 17:
            a("s_add_u32 s%d, s%d, 128" % (S_SX, S_SX))
            a("s_add_u32 s%d, s%d, 0x%x" % (S_SW, S_SW, 64 * 7168))

    for i in range(18):
        dma(i, 0)
    a("s_lshl_b32 s3, s%d, 5" % S_NJ)
    a("v_and_b32 v%d, 15, v0" % V_T)
    a("v_add_u32 v%d, s3, v%d" % (V_T, V_T))
    a("v_lshlrev_b32 v%d, 1, v%d" % (V_T, V_T))
    a("v_and_b32 v%d, 31, v0" % (V_T + 1))
    a("v_add_u32 v%d, s3, v%d" % (V_T + 1, V_T + 1))
    a("v_lshlrev_b32 v%d, 1, v%d" % (V_T + 1, V_T + 1))
    for i, nm in enumerate(['lre', 'lim', 'ldt']):
        sp = SRD_P + 4 * i
        make_srd(a, sp, KA[nm], P * 2)
        a.vm("buffer_load_ushort v%d, v%d, s[%d:%d], 0 offen" % (V_RAW + i, V_T, sp, sp + 3), "raw")
        a.vm("buffer_load_ushort v%d, v%d, s[%d:%d], 0 offen offset:32" % (V_RAW + 3 + i, V_T, sp, sp + 3), "raw")
        a.vm("buffer_load_ushort v%d, v%d, s[%d:%d], 0 offen" % (V_RAW + 6 + i, V_T + 1, sp, sp + 3), "raw")
    GX = V_EPI
    GW = V_EPI + 16
    make_srd(a, SRD_G, KA['gw'], D * 2)
    a("v_lshlrev_b32 v%d, 4, v1" % V_T)
    a.vm("buffer_load_dwordx4 %s, v%d, s[%d:%d], 0 offen" % (vr(GW), V_T, SRD_G, SRD_G + 3), "g")
    a.vm("buffer_load_dwordx4 %s, v%d, s[%d:%d], 0 offen offset:1024" % (vr(GW + 4), V_T, SRD_G, SRD_G + 3), "g")
    a("s_lshl_b32 s3, s%d, 8" % S_MI)
    a("s_lshl_b32 s4, s%d, 3" % S_NJ)
    a("s_add_u32 s3, s3, s4")
    a("s_lshl_b32 s4, s%d, 1" % S_WAVE)
    a("s_add_u32 s%d, s3, s4" % S_GROW)
    a("s_lshl_b32 s3, s%d, 11" % S_GROW)
    a("v_add_u32 v%d, s3, v%d" % (V_T + 1, V_T))
    for q in range(4):
        a.vm("buffer_load_dwordx4 %s, v%d, s[%d:%d], 0 offen offset:%d" % (vr(GX + 4 * q), V_T + 1, SRD_X, SRD_X + 3, q * 1024), "g")
    for i in range(8):
        dma(i, 1)
    a("v_lshrrev_b32 v%d, 4, v1" % V_T)
    a("v_and_b32 v%d, 7, v1" % (V_T + 1))
    a("v_xor_b32 v%d, v%d, v%d" % (V_T, V_T, V_T + 1))
    a("v_lshlrev_b32 v%d, 4, v%d" % (V_T, V_T))
    a("v_and_b32 v%d, 15, v1" % (V_T + 1))
    a("v_lshlrev_b32 v%d, 7, v%d" % (V_T + 1, V_T + 1))
    a("v_add_u32 v%d, v%d, v%d" % (V_T, V_T, V_T + 1))
    a("v_xor_b32 v%d, 64, v%d" % (V_T + 1, V_T))
    a("s_lshl_b32 s3, s%d, 13" % S_WAVE)
    for b in range(2):
        for kk in range(2):
            a("s_add_u32 s4, s3, %d" % (b * BUF + XOFF))
            a("v_add_u32 v%d, s4, v%d" % (V_VA + 2 * b + kk, V_T + kk))
            a("v_add_u32 v%d, 0x%x, v%d" % (V_VBM + 2 * b + kk, b * BUF + BMOFF, V_T + kk))
    a("v_lshrrev_b32 v%d, 4, v1" % V_T)
    a("v_lshlrev_b32 v%d, 2, v%d" % (V_T, V_T))
    a("v_and_b32 v%d, 15, v1" % (V_T + 1))
    a("v_lshrrev_b32 v%d, 2, v%d" % (V_T + 1, V_T + 1))
    a("v_add_u32 v%d, v%d, v%d" % (V_T, V_T, V_T + 1))
    a("v_mul_u32_u24 v%d, 0xe0, v%d" % (V_T, V_T))
    a("v_and_b32 v%d, 3, v1" % (V_T + 1))
    a("v_lshlrev_b32 v%d, 3, v%d" % (V_T + 1, V_T + 1))
    a("v_add_u32 v%d, v%d, v%d" % (V_T, V_T, V_T + 1))
    for b in range(2):
        a("v_add_u32 v%d, 0x%x, v%d" % (V_VWB + b, b * BUF + WOFF, V_T))

    def read_frag(b, ts, slotctr):
        kk, jj = ts // 18, ts % 18
        slot = V_RING + (slotctr % NSLOT) * 4
        tag = "f%d" % (slotctr % NSLOT)
        if jj < 4:
            a.lds("ds_read_b128 %s, v%d offset:%d" % (vr(slot), V_VBM + 2 * b + kk, jj * 2048), tag)
        else:
            idx = jj - 4
            mat, t = idx // 7, idx % 7
            for h in range(2):
                a.lds("ds_read_b64_tr_b16 %s, v%d offset:%d" % (vr(slot + 2 * h, 2), V_VWB + b, mat * WMAT + kk * 7168 + h * 3584 + t * 32), tag)

    def read_a(b, kk, mt):
        a.lds("ds_read_b128 %s, v%d offset:%d" % (vr(V_A + kk * 16 + mt * 4), V_VA + 2 * b + kk, mt * 2048), "A%d" % kk)

    for i in range(256):
        a("v_accvgpr_write_b32 a%d, 0" % i)
    for i in range(32):
        a("v_mov_b32 v%d, 0" % (ACCV + i))
    a.wait_vm("g")
    GS = V_EPI + 24
    for row in range(2):
        a("v_mov_b32 v%d, 0" % (GS + row))
        for q in range(8):
            xs, gs = GX + row * 8 + q, GW + q
            a("v_lshlrev_b32 v%d, 16, v%d" % (V_T, xs))
            a("v_lshlrev_b32 v%d, 16, v%d" % (V_T + 1, gs))
            a("v_and_b32 v%d, 0xffff0000, v%d" % (V_T + 2, xs))
            a("v_and_b32 v%d, 0xffff0000, v%d" % (V_T + 3, gs))
            a("v_mul_f32 v%d, v%d, v%d" % (V_T, V_T, V_T + 1))
            a("v_mul_f32 v%d, v%d, v%d" % (V_T + 2, V_T + 2, V_T + 3))
            a("v_cvt_pk_bf16_f32 v%d, v%d, v%d" % (V_T, V_T, V_T + 2))
            a("v_lshlrev_b32 v%d, 16, v%d" % (V_T + 1, V_T))
            a("v_and_b32 v%d, 0xffff0000, v%d" % (V_T + 2, V_T))
            a("v_add_f32 v%d, v%d, v%d" % (GS + row, GS + row, V_T + 1))
            a("v_add_f32 v%d, v%d, v%d" % (GS + row, GS + row, V_T + 2))
    for k in range(6):
        a("v_xor_b32 v%d, %d, v1" % (V_T, 1 << k))
        a("v_lshlrev_b32 v%d, 2, v%d" % (V_T, V_T))
        a("ds_bpermute_b32 v%d, v%d, v%d" % (V_T + 1, V_T, GS))
        a("ds_bpermute_b32 v%d, v%d, v%d" % (V_T + 2, V_T, GS + 1))
        a("s_waitcnt lgkmcnt(0)")
        a("v_add_f32 v%d, v%d, v%d" % (GS, GS, V_T + 1))
        a("v_add_f32 v%d, v%d, v%d" % (GS + 1, GS + 1, V_T + 2))
    for row in range(2):
        g = GS + row
        a("v_cvt_pk_bf16_f32 v%d, v%d, v%d" % (g, g, g))
        a("v_lshlrev_b32 v%d, 16, v%d" % (g, g))
        a("v_mul_f32 v%d, 0x%x, v%d" % (g, LOG2E | 0x80000000, g))
        a("v_exp_f32 v%d, v%d" % (g, g))
        a("s_nop 0")
        a("v_add_f32 v%d, 1.0, v%d" % (g, g))
        a("v_rcp_f32 v%d, v%d" % (g, g))
        a("s_nop 0")
        a("v_cvt_pk_bf16_f32 v%d, v%d, v%d" % (g, g, g))
        a("v_lshlrev_b32 v%d, 16, v%d" % (g, g))
    a("s_lshl_b32 s3, s%d, 2" % S_GROW)
    a("s_add_u32 s3, s3, 0x%x" % G_OFF)
    a("v_mov_b32 v%d, s3" % V_T)
    a("v_cmp_eq_u32 vcc, 0, v1")
    a("s_and_saveexec_b64 s[4:5], vcc")
    a.vm("buffer_store_dwordx2 %s, v%d, s[%d:%d], 0 offen" % (vr(GS, 2), V_T, SRD_WS, SRD_WS + 3), "gst")
    a("s_mov_b64 exec, s[4:5]")
    a.vq = [t for t in a.vq]
    a("s_barrier")
    stamp(a, 1, SRD_WS, 0)
    for jj in range(PD):
        read_frag(0, jj, jj)
        read_a(0, 0, jj)
    a("s_mov_b32 s%d, 0" % S_CNT)
    lq0, vq0 = list(a.lq), [t for t in a.vq if t != 'gst']
    a.label("K1_loop")
    for b in range(2):
        nb = 1 - b
        for ts in range(36):
            kk, j = ts // 18, ts % 18
            ctr = b * 36 + ts
            if ts < 5:
                dma(8 + 2 * ts, nb)
                dma(9 + 2 * ts, nb)
            if ts == 32:
                a.wait_lds_all()
                a.wait_vm_all()
                a("s_barrier")
            if ts >= 32:
                dma(2 * (ts - 32), b)
                dma(2 * (ts - 32) + 1, b)
            nts = ts + PD
            if nts < 36:
                read_frag(b, nts, ctr + PD)
            else:
                read_frag(nb, nts - 36, ctr + PD)
            if 14 <= ts < 18:
                read_a(b, 1, ts - 14)
            if ts >= 32:
                read_a(nb, 0, ts - 32)
            tags = ["f%d" % (ctr % NSLOT)]
            if j == 0:
                tags.append("A%d" % kk)
            a.wait_lds(tags)
            slot = vr(V_RING + (ctr % NSLOT) * 4)
            for mt in range(4):
                xa = vr(V_A + kk * 16 + mt * 4)
                if j < 4:
                    a("v_mfma_f32_16x16x32_bf16 %s, %s, %s, %s" % (accs(j, mt), xa, slot, accs(j, mt)))
                else:
                    a("v_mfma_f32_16x16x32_bf16 %s, %s, %s, %s" % (accs(j, mt), slot, xa, accs(j, mt)))
    assert a.lq == lq0 and a.vq == vq0, (a.lq, lq0, a.vq, vq0)
    a("s_add_u32 s%d, s%d, 1" % (S_CNT, S_CNT))
    a("s_cmp_lt_u32 s%d, 8" % S_CNT)
    a("s_cbranch_scc1 K1_loop")
    a.wait_vm_all()
    a.wait_lds_all()
    a("s_barrier")
    a("s_nop 7")
    stamp(a, 2, SRD_WS, 0)

    SCS = 2064
    ESEG = 0
    SCB = 4096
    PR = V_EPI
    LR, LI = 216, 217
    P32 = 220
    CA = 222
    PW32 = V_T + 14
    for i in range(2):
        ssm_params(a, V_RAW + 3 * i, PR + 4 * i, V_T)
    ssm_params(a, V_RAW + 6, PR + 8, V_T)
    a("v_mov_b32 v%d, v%d" % (LR, PR + 8))
    a("v_mov_b32 v%d, v%d" % (LI, PR + 9))
    a("v_and_b32 v%d, 15, v1" % V_T)
    a("s_movk_i32 s3, %d" % SCS)
    a("v_mul_lo_u32 v%d, s3, v%d" % (V_T, V_T))
    a("v_lshrrev_b32 v%d, 4, v1" % (V_T + 1))
    a("v_lshlrev_b32 v%d, 5, v%d" % (V_T + 1, V_T + 1))
    a("v_add_u32 v%d, v%d, v%d" % (V_T, V_T, V_T + 1))
    a("s_lshl_b32 s3, s%d, 9" % S_WAVE)
    a("v_add_u32 v%d, s3, v%d" % (V_T, V_T))
    a("v_add_u32 v%d, %d, v%d" % (V_T, SCB, V_T))
    W = V_EPI + 16
    for ct in range(2):
        cr, ci = PR + 4 * ct + 2, PR + 4 * ct + 3
        for mt in range(4):
            _, ur = acc(ct, mt)
            _, ui = acc(2 + ct, mt)
            WW = W + (mt & 1) * 16
            for r in range(4):
                a("v_accvgpr_read_b32 v%d, a%d" % (WW + 8 + r, ur + r))
                a("v_accvgpr_read_b32 v%d, a%d" % (WW + 12 + r, ui + r))
            for r in range(4):
                a("v_mul_f32 v%d, v%d, v%d" % (WW + 2 * r, cr, WW + 8 + r))
                a("v_mul_f32 v%d, v%d, v%d" % (WW + 2 * r + 1, cr, WW + 12 + r))
                a("v_fma_f32 v%d, -v%d, v%d, v%d" % (WW + 2 * r, ci, WW + 12 + r, WW + 2 * r))
                a("v_fma_f32 v%d, v%d, v%d, v%d" % (WW + 2 * r + 1, ci, WW + 8 + r, WW + 2 * r + 1))
            off = ct * 16 * SCS + mt * 128
            a("ds_write_b128 v%d, %s offset:%d" % (V_T, vr(WW), off))
            a("ds_write_b128 v%d, %s offset:%d" % (V_T, vr(WW + 4), off + 16))
    a("s_waitcnt lgkmcnt(0)")
    a("s_barrier")
    VSEG = V_T + 13
    a("v_and_b32 v%d, 31, v0" % V_T)
    a("s_movk_i32 s3, %d" % SCS)
    a("v_mul_lo_u32 v%d, s3, v%d" % (V_T, V_T))
    a("v_lshrrev_b32 v%d, 5, v0" % VSEG)
    a("v_lshlrev_b32 v%d, 8, v%d" % (V_T + 2, VSEG))
    a("v_add_u32 v%d, v%d, v%d" % (V_T, V_T, V_T + 2))
    a("v_add_u32 v%d, %d, v%d" % (V_T, SCB, V_T))
    H = 152
    for i in range(16):
        a("ds_read_b128 %s, v%d offset:%d" % (vr(H + 4 * i), V_T, i * 16))
    TT = V_T + 4
    for i in range(32):
        if i % 2 == 0:
            a("s_waitcnt lgkmcnt(%d)" % (15 - i // 2))
        if i > 0:
            cfma(a, H + 2 * i, H + 2 * i + 1, LR, LI, H + 2 * i - 2, H + 2 * i - 1, H + 2 * i, H + 2 * i + 1, TT)
    a("v_lshlrev_b32 v%d, 3, v0" % (V_T + 2))
    a("ds_write_b64 v%d, %s offset:%d" % (V_T + 2, vr(H + 62, 2), ESEG))
    a("v_mov_b32 v%d, v%d" % (P32, LR))
    a("v_mov_b32 v%d, v%d" % (P32 + 1, LI))
    for i in range(5):
        cmul(a, P32, P32 + 1, P32, P32 + 1, P32, P32 + 1, TT)
    a("s_waitcnt lgkmcnt(0)")
    a("s_barrier")
    AC = V_EPI
    PWX = V_EPI + 2
    EE = V_EPI + 4
    a("v_and_b32 v%d, 31, v0" % (V_T + 2))
    a("v_lshlrev_b32 v%d, 3, v%d" % (V_T + 2, V_T + 2))
    for s_ in range(8):
        a("ds_read_b64 %s, v%d offset:%d" % (vr(EE + 2 * s_, 2), V_T + 2, ESEG + s_ * 256))
    a("v_mov_b32 v%d, 0" % AC)
    a("v_mov_b32 v%d, 0" % (AC + 1))
    a("v_mov_b32 v%d, 0" % CA)
    a("v_mov_b32 v%d, 0" % (CA + 1))
    a("v_mov_b32 v%d, 1.0" % PWX)
    a("v_mov_b32 v%d, 0" % (PWX + 1))
    a("v_mov_b32 v%d, 1.0" % PW32)
    a("v_mov_b32 v%d, 0" % (PW32 + 1))
    a("s_waitcnt lgkmcnt(0)")
    for s_ in range(8):
        if s_ > 0:
            cmul(a, PWX, PWX + 1, PWX, PWX + 1, P32, P32 + 1, TT)
            a("v_cmp_eq_u32 vcc, %d, v%d" % (s_, VSEG))
            a("s_nop 1")
            a("v_cndmask_b32 v%d, v%d, v%d, vcc" % (CA, CA, AC))
            a("v_cndmask_b32 v%d, v%d, v%d, vcc" % (CA + 1, CA + 1, AC + 1))
            a("v_cndmask_b32 v%d, v%d, v%d, vcc" % (PW32, PW32, PWX))
            a("v_cndmask_b32 v%d, v%d, v%d, vcc" % (PW32 + 1, PW32 + 1, PWX + 1))
        cfma(a, AC, AC + 1, P32, P32 + 1, AC, AC + 1, EE + 2 * s_, EE + 2 * s_ + 1, TT)
    a("s_lshl_b32 s3, s%d, 10" % S_MI)
    a("s_lshl_b32 s4, s%d, 5" % S_NJ)
    a("s_add_u32 s3, s3, s4")
    a("s_lshl_b32 s3, s3, 3")
    a("s_add_u32 s3, s3, 0x%x" % E_OFF)
    a("v_add_u32 v%d, s3, v%d" % (V_T + 2, V_T + 2))
    make_srd(a, SRD_P, KA['dbg'], 256)
    a("s_cmp_lg_u32 s%d, 0" % S_WAVE)
    a("s_cbranch_scc1 K1_pub_done")
    a("v_cmp_gt_u32 vcc, 32, v0")
    a("s_and_saveexec_b64 s[4:5], vcc")
    a("buffer_store_dwordx2 %s, v%d, s[%d:%d], 0 offen sc1" % (vr(AC, 2), V_T + 2, SRD_WS, SRD_WS + 3))
    a("s_mov_b64 exec, s[4:5]")
    a("s_waitcnt vmcnt(0)")
    a("s_lshl_b32 s3, 1, s%d" % S_MI)
    a("v_mov_b32 v%d, s3" % (V_T + 3))
    a("s_lshl_b32 s3, s%d, 2" % S_NJ)
    a("v_mov_b32 v%d, s3" % (V_T + 2))
    a("v_cmp_eq_u32 vcc, 0, v0")
    a("s_and_saveexec_b64 s[4:5], vcc")
    a("buffer_atomic_or v%d, v%d, s[%d:%d], 0 offen sc1" % (V_T + 3, V_T + 2, SRD_P, SRD_P + 3))
    a("s_mov_b64 exec, s[4:5]")
    a.label("K1_pub_done")
    stamp(a, 3, SRD_WS, 0)

    SB = V_T + 8
    a("s_lshl_b32 s3, s%d, 8" % S_MI)
    a("s_lshl_b32 s4, s%d, 6" % S_WAVE)
    a("s_add_u32 s3, s3, s4")
    a("v_and_b32 v%d, 15, v1" % V_T)
    a("v_add_u32 v%d, s3, v%d" % (V_T, V_T))
    a("s_movk_i32 s4, 0x1c00")
    a("v_mul_lo_u32 v%d, s4, v%d" % (V_T, V_T))
    a("v_lshrrev_b32 v%d, 4, v1" % (V_T + 1))
    a("v_lshlrev_b32 v%d, 3, v%d" % (V_T + 1, V_T + 1))
    a("v_add_u32 v%d, v%d, v%d" % (V_T, V_T, V_T + 1))
    a("s_mul_i32 s3, s%d, 224" % S_NJ)
    a("s_add_u32 s3, s3, 0x%x" % HMID_OFF)
    for mt in range(4):
        a("s_add_u32 s4, s3, 0x%x" % (mt * 16 * 7168))
        a("v_add_u32 v%d, s4, v%d" % (SB + mt, V_T))
    a("s_mov_b32 s6, 0x%x" % (LOG2E | 0x80000000))
    a("s_mov_b32 s7, 0x%x" % (LOG2E | 0x80000000))
    cnt = 0
    for t in range(7):
        for mt in range(4):
            base = V_EPI + (cnt % 2) * 24
            cnt += 1
            G, U, Tm = base, base + 4, base + 8
            kg, bg = acc(4 + t, mt)
            ku, bu = acc(11 + t, mt)
            for r in range(4):
                a("v_accvgpr_read_b32 v%d, a%d" % (G + r, bg + r))
            if ku == 'a':
                for r in range(4):
                    a("v_accvgpr_read_b32 v%d, a%d" % (U + r, bu + r))
                us = U
            else:
                us = bu
            for p in range(2):
                a("v_cvt_pk_bf16_f32 v%d, v%d, v%d" % (Tm + 8 + p, G + 2 * p, G + 2 * p + 1))
                a("v_cvt_pk_bf16_f32 v%d, v%d, v%d" % (Tm + 10 + p, us + 2 * p, us + 2 * p + 1))
            for p in range(2):
                a("v_lshlrev_b32 v%d, 16, v%d" % (G + 2 * p, Tm + 8 + p))
                a("v_and_b32 v%d, 0xffff0000, v%d" % (G + 2 * p + 1, Tm + 8 + p))
            for p in range(2):
                a("v_pk_mul_f32 %s, %s, s[6:7]" % (vr(Tm + 2 * p, 2), vr(G + 2 * p, 2)))
            for r in range(4):
                a("v_exp_f32 v%d, v%d" % (Tm + r, Tm + r))
            for p in range(2):
                a("v_lshlrev_b32 v%d, 16, v%d" % (U + 2 * p, Tm + 10 + p))
                a("v_and_b32 v%d, 0xffff0000, v%d" % (U + 2 * p + 1, Tm + 10 + p))
            for p in range(2):
                a("v_pk_add_f32 %s, %s, 1.0 op_sel_hi:[1,0]" % (vr(Tm + 2 * p, 2), vr(Tm + 2 * p, 2)))
            for r in range(4):
                a("v_rcp_f32 v%d, v%d" % (Tm + r, Tm + r))
            a("s_nop 0")
            for p in range(2):
                a("v_pk_mul_f32 %s, %s, %s" % (vr(Tm + 2 * p, 2), vr(Tm + 2 * p, 2), vr(G + 2 * p, 2)))
            for p in range(2):
                a("v_cvt_pk_bf16_f32 v%d, v%d, v%d" % (Tm + 8 + p, Tm + 2 * p, Tm + 2 * p + 1))
            for p in range(2):
                a("v_lshlrev_b32 v%d, 16, v%d" % (Tm + 2 * p, Tm + 8 + p))
                a("v_and_b32 v%d, 0xffff0000, v%d" % (Tm + 2 * p + 1, Tm + 8 + p))
            for p in range(2):
                a("v_pk_mul_f32 %s, %s, %s" % (vr(Tm + 2 * p, 2), vr(Tm + 2 * p, 2), vr(U + 2 * p, 2)))
            for p in range(2):
                a("v_cvt_pk_bf16_f32 v%d, v%d, v%d" % (base + 20 + p, Tm + 2 * p, Tm + 2 * p + 1))
            a("buffer_store_dwordx2 %s, v%d, s[%d:%d], 0 offen offset:%d" % (vr(base + 20, 2), SB + mt, SRD_WS, SRD_WS + 3, t * 32))

    a("s_lshl_b32 s3, 1, s%d" % S_MI)
    a("s_sub_u32 s3, s3, 1")
    a("s_lshl_b32 s4, s%d, 2" % S_NJ)
    a("v_mov_b32 v%d, s4" % (V_T + 2))
    a("s_mov_b32 s5, 0")
    a.label("K1_poll")
    a("buffer_load_dword v%d, v%d, s[%d:%d], 0 offen sc1" % (V_T + 3, V_T + 2, SRD_P, SRD_P + 3))
    a("s_waitcnt vmcnt(0)")
    a("v_readfirstlane_b32 s6, v%d" % (V_T + 3))
    a("s_and_b32 s6, s6, s3")
    a("s_cmp_eq_u32 s6, s3")
    a("s_cbranch_scc1 K1_poll_done")
    a("s_sleep 4")
    a("s_add_u32 s5, s5, 1")
    a("s_cmp_lt_u32 s5, 0x40000")
    a("s_cbranch_scc1 K1_poll")
    a.label("K1_poll_done")
    EJ = V_EPI
    CIN = V_EPI + 16
    P256 = V_EPI + 18
    a("s_lshl_b32 s4, s%d, 8" % S_NJ)
    a("s_add_u32 s4, s4, 0x%x" % E_OFF)
    a("v_and_b32 v%d, 31, v0" % (V_T + 2))
    a("v_lshlrev_b32 v%d, 3, v%d" % (V_T + 2, V_T + 2))
    a("v_add_u32 v%d, s4, v%d" % (V_T + 2, V_T + 2))
    for j in range(7):
        a("buffer_load_dwordx2 %s, v%d, s[%d:%d], 0 offen sc1" % (vr(EJ + 2 * j, 2), V_T + 2, SRD_WS, SRD_WS + 3))
        if j < 6:
            a("v_add_u32 v%d, 0x2000, v%d" % (V_T + 2, V_T + 2))
    a("v_mov_b32 v%d, v%d" % (P256, P32))
    a("v_mov_b32 v%d, v%d" % (P256 + 1, P32 + 1))
    for i in range(3):
        cmul(a, P256, P256 + 1, P256, P256 + 1, P256, P256 + 1, TT)
    a("v_mov_b32 v%d, 0" % CIN)
    a("v_mov_b32 v%d, 0" % (CIN + 1))
    a("s_waitcnt vmcnt(0)")
    for j in range(7):
        a("s_cmp_le_u32 s%d, %d" % (S_MI, j))
        a("s_cbranch_scc1 K1_cin_done")
        cfma(a, CIN, CIN + 1, P256, P256 + 1, CIN, CIN + 1, EJ + 2 * j, EJ + 2 * j + 1, TT)
    a.label("K1_cin_done")
    cfma(a, CA, CA + 1, PW32, PW32 + 1, CIN, CIN + 1, CA, CA + 1, TT)
    a("s_lshl_b32 s3, s%d, 19" % S_MI)
    a("s_lshl_b32 s4, s%d, 5" % S_NJ)
    a("s_add_u32 s3, s3, s4")
    a("s_lshl_b32 s3, s3, 1")
    a("s_add_u32 s3, s3, 0x%x" % HS_OFF)
    a("v_lshlrev_b32 v%d, 17, v%d" % (V_T + 3, VSEG))
    a("v_and_b32 v%d, 31, v0" % (V_T + 2))
    a("v_lshlrev_b32 v%d, 1, v%d" % (V_T + 2, V_T + 2))
    a("v_add_u32 v%d, v%d, v%d" % (V_T + 2, V_T + 2, V_T + 3))
    a("v_add_u32 v%d, s3, v%d" % (V_T + 2, V_T + 2))
    PW = V_EPI + 20
    a("v_mov_b32 v%d, v%d" % (PW, LR))
    a("v_mov_b32 v%d, v%d" % (PW + 1, LI))
    for i in range(32):
        cfma(a, H + 2 * i, H + 2 * i + 1, PW, PW + 1, CA, CA + 1, H + 2 * i, H + 2 * i + 1, TT)
        a("v_cvt_pk_bf16_f32 v%d, v%d, -v%d" % (H + 2 * i, H + 2 * i, H + 2 * i + 1))
        a("buffer_store_short v%d, v%d, s[%d:%d], 0 offen" % (H + 2 * i, V_T + 2, SRD_WS, SRD_WS + 3))
        a("buffer_store_short_d16_hi v%d, v%d, s[%d:%d], 0 offen offset:2048" % (H + 2 * i, V_T + 2, SRD_WS, SRD_WS + 3))
        if i < 31:
            cmul(a, PW, PW + 1, PW, PW + 1, LR, LI, TT)
            a("v_add_u32 v%d, 0x1000, v%d" % (V_T + 2, V_T + 2))
    if STAMP:
        a("s_waitcnt vmcnt(0)")
    stamp(a, 4, SRD_WS, 0)
    a.label("K1_done")
    a("s_endpgm")
    return a.text()


DESC = kernel_desc(NAME, 512, 256)
LAUNCH = "; @launch kernel=%s grid=(256,1,1) block=(256,1,1) lds=%d" % (NAME, LDS_BYTES)
```

```python
from common import *

NAME = "k3_kernel"
SB = 24576
PBUF = 3 * SB
LDS_BYTES = 2 * PBUF

SRD_WS, SRD_C, SRD_W2, SRD_X, SRD_OUT, SRD_DS = 8, 12, 16, 20, 24, 28
S_WAVE, S_MI, S_NJ, S_KH, S_MH = 32, 33, 34, 35, 36
S_CNT, S_STEP, S_SA, S_SBO = 37, 38, 39, 40
S_RB, S_WB, S_PBASE = 41, 42, 43
S_T = 44
V_VA = 2
V_VB = 10
V_BX = 14
V_BC = 16
V_BW = 18
V_RX = 22
V_T = 28
V_XF = 40
V_WF = 104
V_EPI = 40


def gen():
    a = Asm()
    a("s_cmp_ge_u32 s2, 256")
    a("s_cbranch_scc1 K3_done")
    load_kernargs(a)
    a("v_lshrrev_b32 v1, 6, v0")
    a("s_nop 0")
    a("v_readfirstlane_b32 s%d, v1" % S_WAVE)
    a("s_and_b32 s3, s2, 7")
    a("s_lshr_b32 s4, s2, 3")
    a("s_and_b32 s5, s3, 1")
    a("s_lshl_b32 s5, s5, 3")
    a("s_and_b32 s%d, s4, 7" % S_NJ)
    a("s_add_u32 s%d, s%d, s5" % (S_NJ, S_NJ))
    a("s_lshr_b32 s4, s4, 3")
    a("s_lshr_b32 s3, s3, 1")
    a("s_lshl_b32 s3, s3, 2")
    a("s_add_u32 s%d, s3, s4" % S_MI)
    a("s_lshr_b32 s%d, s%d, 1" % (S_KH, S_WAVE))
    a("s_and_b32 s%d, s%d, 1" % (S_MH, S_WAVE))
    a("v_and_b32 v1, 63, v0")
    a("s_waitcnt lgkmcnt(0)")
    make_srd(a, SRD_WS, KA['ws'], WS_BYTES)
    make_srd(a, SRD_W2, KA['w2'], F * D * 2)
    make_srd(a, SRD_X, KA['x'], L * D * 2)
    make_srd(a, SRD_OUT, KA['out'], L * D * 4)
    make_srd(a, SRD_DS, KA['dskip'], D * 2)
    stamp(a, 0, SRD_WS, 2)
    a("s_mov_b32 s%d, 0x%x" % (SRD_C + 2, D * P * 2))
    a("s_mov_b32 s%d, 0x00020000" % (SRD_C + 3))
    a("s_mul_i32 s%d, s%d, %d" % (S_PBASE, S_KH, PBUF))
    a("v_lshrrev_b32 v%d, 4, v1" % V_T)
    a("v_and_b32 v%d, 7, v1" % (V_T + 1))
    a("v_xor_b32 v%d, v%d, v%d" % (V_T, V_T, V_T + 1))
    a("v_lshlrev_b32 v%d, 4, v%d" % (V_T, V_T))
    a("v_and_b32 v%d, 15, v1" % (V_T + 1))
    a("v_lshlrev_b32 v%d, 7, v%d" % (V_T + 1, V_T + 1))
    a("v_add_u32 v%d, v%d, v%d" % (V_T, V_T, V_T + 1))
    a("v_xor_b32 v%d, 64, v%d" % (V_T + 1, V_T))
    a("s_lshl_b32 s3, s%d, 13" % S_MH)
    for kk in range(2):
        a("v_add_u32 v%d, s3, v%d" % (V_BX + kk, V_T + kk))
        a("v_add_u32 v%d, 0x4000, v%d" % (V_BC + kk, V_T + kk))
    a("v_lshrrev_b32 v%d, 4, v1" % V_T)
    a("v_lshlrev_b32 v%d, 2, v%d" % (V_T, V_T))
    a("v_and_b32 v%d, 15, v1" % (V_T + 1))
    a("v_lshrrev_b32 v%d, 2, v%d" % (V_T + 1, V_T + 1))
    a("v_add_u32 v%d, v%d, v%d" % (V_T, V_T, V_T + 1))
    a("v_lshrrev_b32 v%d, 1, v%d" % (V_T + 1, V_T))
    a("v_and_b32 v%d, 3, v%d" % (V_T + 1, V_T + 1))
    a("v_lshlrev_b32 v%d, 7, v%d" % (V_T, V_T))
    a("v_and_b32 v%d, 3, v1" % (V_T + 2))
    a("v_lshlrev_b32 v%d, 3, v%d" % (V_T + 2, V_T + 2))
    a("v_add_u32 v%d, v%d, v%d" % (V_T, V_T, V_T + 2))
    a("v_add_u32 v%d, 0x4000, v%d" % (V_T, V_T))
    for nt in range(4):
        a("v_xor_b32 v%d, %d, v%d" % (V_T + 2, nt, V_T + 1))
        a("v_lshlrev_b32 v%d, 5, v%d" % (V_T + 2, V_T + 2))
        a("v_add_u32 v%d, v%d, v%d" % (V_BW + nt, V_T, V_T + 2))

    def lane_rowpart(pitch):
        a("v_lshrrev_b32 v%d, 3, v1" % (V_T + 1))
        a("v_and_b32 v%d, 7, v1" % V_T)
        a("v_xor_b32 v%d, v%d, v%d" % (V_T, V_T, V_T + 1))
        a("v_lshlrev_b32 v%d, 4, v%d" % (V_T, V_T))
        a("s_mov_b32 s%d, %d" % (S_T, pitch))
        a("v_mul_lo_u32 v%d, s%d, v%d" % (V_T + 1, S_T, V_T + 1))
        a("v_add_u32 v%d, v%d, v%d" % (V_T, V_T, V_T + 1))

    def dma(seg, idx, tag):
        if idx < 8:
            if idx % 4 == 0:
                a("s_lshl_b32 s%d, s%d, 13" % (S_T, S_MH))
                a("s_add_u32 s%d, s%d, s%d" % (S_T, S_T, S_WB))
                a("s_add_u32 m0, s%d, %d" % (S_T, (idx // 4) * 4096))
                a("s_nop 0")
            a.vm("buffer_load_dwordx4 v%d, s[%d:%d], s%d offen offset:%d lds" %
                 (V_VA + idx, SRD_WS, SRD_WS + 3, S_SA, (idx % 4) * 1024), tag)
        else:
            i = idx - 8
            if i == 0:
                a("s_lshl_b32 s%d, s%d, 12" % (S_T, S_MH))
                a("s_add_u32 s%d, s%d, s%d" % (S_T, S_T, S_WB))
                a("s_add_u32 m0, s%d, 16384" % S_T)
                a("s_nop 0")
            srd = SRD_C if seg == 0 else SRD_W2
            a.vm("buffer_load_dwordx4 v%d, s[%d:%d], s%d offen offset:%d lds" %
                 (V_VB + i, srd, srd + 3, S_SBO, i * 1024), tag)

    def rot(s):
        a("s_add_u32 s%d, s%d, %d" % (s, s, SB))
        a("s_add_u32 s%d, s%d, %d" % (S_T, S_PBASE, 3 * SB))
        a("s_cmp_ge_u32 s%d, s%d" % (s, S_T))
        a("s_cselect_b32 s%d, s%d, s%d" % (s, S_PBASE, s))

    def advance_dma(seg):
        a("s_add_u32 s%d, s%d, 1" % (S_STEP, S_STEP))
        a("s_lshl_b32 s%d, s%d, 7" % (S_SA, S_STEP))
        if seg == 0:
            a("s_and_b32 s%d, s%d, 15" % (S_SBO, S_STEP))
            a("s_lshl_b32 s%d, s%d, 7" % (S_SBO, S_SBO))
            a("s_cmp_lt_u32 s%d, 16" % S_STEP)
            a("s_cselect_b32 s%d, s%d, s%d" % (SRD_C, KA['cre'], KA['cim']))
            a("s_cselect_b32 s%d, s%d, s%d" % (SRD_C + 1, KA['cre'] + 1, KA['cim'] + 1))
            a("s_and_b32 s%d, s%d, 0xffff" % (SRD_C + 1, SRD_C + 1))
        else:
            a("s_lshl_b32 s%d, s%d, 17" % (S_SBO, S_STEP))
        rot(S_WB)

    def set_read_addrs(seg):
        for kk in range(2):
            a("v_add_u32 v%d, s%d, v%d" % (V_RX + kk, S_RB, V_BX + kk))
        if seg == 0:
            for kk in range(2):
                a("v_add_u32 v%d, s%d, v%d" % (V_RX + 2 + kk, S_RB, V_BC + kk))
        else:
            for nt in range(4):
                a("v_add_u32 v%d, s%d, v%d" % (V_RX + 2 + nt, S_RB, V_BW + nt))

    def frag_reads(seg, par):
        out = []
        tag = "F%d" % par
        for kk in range(2):
            for nt in range(4):
                d = V_WF + par * 32 + kk * 16 + nt * 4
                if seg == 0:
                    out.append(lambda d=d, kk=kk, nt=nt: a.lds("ds_read_b128 %s, v%d offset:%d" % (vr(d), V_RX + 2 + kk, nt * 2048), tag))
                else:
                    for h in range(2):
                        out.append(lambda d=d, kk=kk, nt=nt, h=h: a.lds("ds_read_b64_tr_b16 %s, v%d offset:%d" % (vr(d + 2 * h, 2), V_RX + 2 + nt, kk * 4096 + h * 2048), tag))
            for mt in range(4):
                d = V_XF + par * 32 + kk * 16 + mt * 4
                out.append(lambda d=d, kk=kk, mt=mt: a.lds("ds_read_b128 %s, v%d offset:%d" % (vr(d), V_RX + kk, mt * 2048), tag))
        return out

    uid = [0]

    def segment(seg):
        uid[0] += 1
        lab = "K3_seg%d_%d" % (seg, uid[0])
        accb = 0 if seg == 0 else 64
        if seg == 0:
            lane_rowpart(4096)
            a("s_lshl_b32 s3, s%d, 1" % S_MI)
            a("s_add_u32 s3, s3, s%d" % S_MH)
            a("s_lshl_b32 s3, s3, 18")
            a("s_add_u32 s3, s3, 0x%x" % HS_OFF)
            for i in range(8):
                a("s_add_u32 s4, s3, 0x%x" % (i * 8 * 4096 - (i % 4) * 1024))
                a("v_add_u32 v%d, s4, v%d" % (V_VA + i, V_T))
            lane_rowpart(2048)
            a("s_lshl_b32 s3, s%d, 1" % S_NJ)
            a("s_add_u32 s3, s3, s%d" % S_MH)
            a("s_lshl_b32 s3, s3, 16")
            for i in range(4):
                a("s_add_u32 s4, s3, 0x%x" % (i * 8 * 2048 - i * 1024))
                a("v_add_u32 v%d, s4, v%d" % (V_VB + i, V_T))
        else:
            lane_rowpart(7168)
            a("s_lshl_b32 s3, s%d, 1" % S_MI)
            a("s_add_u32 s3, s3, s%d" % S_MH)
            a("s_mul_i32 s3, s3, 0x%x" % (64 * 7168))
            a("s_add_u32 s3, s3, 0x%x" % HMID_OFF)
            for i in range(8):
                a("s_add_u32 s4, s3, 0x%x" % (i * 8 * 7168 - (i % 4) * 1024))
                a("v_add_u32 v%d, s4, v%d" % (V_VA + i, V_T))
            for i in range(4):
                a("v_lshrrev_b32 v%d, 3, v1" % V_T)
                a("v_add_u32 v%d, %d, v%d" % (V_T, 8 * i, V_T))
                a("v_lshrrev_b32 v%d, 2, v%d" % (V_T + 1, V_T))
                a("v_and_b32 v%d, 3, v%d" % (V_T + 1, V_T + 1))
                a("v_lshlrev_b32 v%d, 3, v%d" % (V_T + 1, V_T + 1))
                a("v_and_b32 v%d, 3, v%d" % (V_T + 2, V_T))
                a("v_add_u32 v%d, v%d, v%d" % (V_T + 1, V_T + 1, V_T + 2))
                a("v_add_u32 v%d, %d, v%d" % (V_T + 1, (i >> 1) * 4, V_T + 1))
                a("v_lshlrev_b32 v%d, 11, v%d" % (V_T + 1, V_T + 1))
                a("v_lshrrev_b32 v%d, 1, v%d" % (V_T + 2, V_T))
                a("v_and_b32 v%d, 3, v%d" % (V_T + 2, V_T + 2))
                a("v_lshrrev_b32 v%d, 1, v1" % (V_T + 3))
                a("v_and_b32 v%d, 3, v%d" % (V_T + 3, V_T + 3))
                a("v_xor_b32 v%d, v%d, v%d" % (V_T + 2, V_T + 2, V_T + 3))
                a("v_lshlrev_b32 v%d, 5, v%d" % (V_T + 2, V_T + 2))
                a("v_and_b32 v%d, 1, v1" % (V_T + 3))
                a("v_lshlrev_b32 v%d, 4, v%d" % (V_T + 3, V_T + 3))
                a("v_add3_u32 v%d, v%d, v%d, v%d" % (V_T + 1, V_T + 1, V_T + 2, V_T + 3))
                a("s_lshl_b32 s3, s%d, 7" % S_NJ)
                a("s_lshl_b32 s4, s%d, 16" % S_MH)
                a("s_add_u32 s3, s3, s4")
                a("s_sub_u32 s3, s3, %d" % (i * 1024))
                a("v_add_u32 v%d, s3, v%d" % (V_VB + i, V_T + 1))
        a("s_sub_u32 s%d, s%d, 1" % (S_STEP, S_STEP))
        a("s_mov_b32 s%d, s%d" % (S_RB, S_PBASE))
        a("s_mov_b32 s%d, s%d" % (S_WB, S_PBASE))
        advance_dma(seg)
        a("s_mov_b32 s%d, s%d" % (S_WB, S_PBASE))
        for st in range(3):
            for i in range(12):
                dma(seg, i, "D")
            advance_dma(seg)
        a("s_waitcnt vmcnt(24)")
        a.vq = a.vq[12:]
        a("s_barrier")
        set_read_addrs(seg)
        for f in frag_reads(seg, 0):
            f()
        rot(S_RB)
        a.label(lab + "_loop")
        for par in range(2):
            a("s_waitcnt vmcnt(12) lgkmcnt(0)")
            a.vq = a.vq[12:]
            a.lq = []
            a("s_barrier")
            set_read_addrs(seg)
            reads = frag_reads(seg, 1 - par)
            n = 0
            for kk in range(2):
                for nt in range(4):
                    for mt in range(4):
                        if n < len(reads):
                            reads[n]()
                        if 8 <= n < 20:
                            dma(seg, n - 8, "D")
                        ab = accb + (nt * 4 + mt) * 4
                        a("v_mfma_f32_16x16x32_bf16 %s, %s, %s, %s" % (ar(ab), vr(V_WF + par * 32 + kk * 16 + nt * 4), vr(V_XF + par * 32 + kk * 16 + mt * 4), ar(ab)))
                        n += 1
            advance_dma(seg)
            rot(S_RB)
        a("s_sub_u32 s%d, s%d, 2" % (S_CNT, S_CNT))
        a("s_cmp_gt_u32 s%d, 0" % S_CNT)
        a("s_cbranch_scc1 %s_loop" % lab)
        a.wait_vm_all()
        a.wait_lds_all()
        a("s_barrier")

    for i in range(128):
        a("v_accvgpr_write_b32 a%d, 0" % i)
    a("s_mov_b32 s%d, 32" % S_CNT)
    a("s_cmp_eq_u32 s%d, 0" % S_KH)
    a("s_cbranch_scc0 K3_p1_b")
    a("s_mov_b32 s%d, 0" % S_STEP)
    segment(0)
    a("s_branch K3_p1_end")
    a.label("K3_p1_b")
    a("s_mov_b32 s%d, 12" % S_STEP)
    segment(1)
    a.label("K3_p1_end")
    stamp(a, 1, SRD_WS, 2)
    a("s_mov_b32 s%d, 12" % S_CNT)
    a("s_cmp_eq_u32 s%d, 0" % S_KH)
    a("s_cselect_b32 s%d, 0, 44" % S_STEP)
    segment(1)
    stamp(a, 2, SRD_WS, 2)
    a("s_nop 7")
    a("v_lshlrev_b32 v%d, 4, v1" % V_T)
    a("s_mul_i32 s3, s%d, 24576" % S_MH)
    a("v_add_u32 v%d, s3, v%d" % (V_T, V_T))
    a("s_cmp_eq_u32 s%d, 0" % S_KH)
    a("s_cbranch_scc0 K3_wr_1")
    cnt = 0
    for (ty, ab) in ((1, 0), (2, 64)):
        for nt in range(4):
            for q in range(2):
                tmp = V_EPI + (cnt % 8) * 4
                cnt += 1
                for r in range(4):
                    a("v_accvgpr_read_b32 v%d, a%d" % (tmp + r, ab + (nt * 4 + 2 + q) * 4 + r))
                a("ds_write_b128 v%d, %s offset:%d" % (V_T, vr(tmp), ty * 8192 + (nt * 2 + q) * 1024))
    a("s_branch K3_wr_end")
    a.label("K3_wr_1")
    for nt in range(4):
        for q in range(2):
            tmp = V_EPI + (cnt % 8) * 4
            cnt += 1
            for r in range(4):
                a("v_accvgpr_read_b32 v%d, a%d" % (tmp + r, 64 + (nt * 4 + q) * 4 + r))
            a("ds_write_b128 v%d, %s offset:%d" % (V_T, vr(tmp), (nt * 2 + q) * 1024))
    a.label("K3_wr_end")
    a("s_waitcnt lgkmcnt(0)")
    a("s_barrier")
    VM, VN = V_T + 2, V_T + 3
    a("s_lshl_b32 s3, s%d, 7" % S_MI)
    a("s_lshl_b32 s4, s%d, 6" % S_MH)
    a("s_add_u32 s3, s3, s4")
    a("s_lshl_b32 s4, s%d, 5" % S_KH)
    a("s_add_u32 s3, s3, s4")
    a("v_and_b32 v%d, 15, v1" % VM)
    a("v_add_u32 v%d, s3, v%d" % (VM, VM))
    a("s_lshl_b32 s3, s%d, 6" % S_NJ)
    a("v_lshrrev_b32 v%d, 4, v1" % VN)
    a("v_lshlrev_b32 v%d, 2, v%d" % (VN, VN))
    a("v_add_u32 v%d, s3, v%d" % (VN, VN))
    GG = V_EPI
    DS = V_EPI + 2
    XX = V_EPI + 10
    a("v_lshlrev_b32 v%d, 2, v%d" % (V_T + 4, VM))
    a("v_add_u32 v%d, 0x%x, v%d" % (V_T + 4, G_OFF, V_T + 4))
    a("buffer_load_dword v%d, v%d, s[%d:%d], 0 offen" % (GG, V_T + 4, SRD_WS, SRD_WS + 3))
    a("buffer_load_dword v%d, v%d, s[%d:%d], 0 offen offset:64" % (GG + 1, V_T + 4, SRD_WS, SRD_WS + 3))
    a("v_lshlrev_b32 v%d, 1, v%d" % (V_T + 4, VN))
    for nt in range(4):
        a("buffer_load_dwordx2 %s, v%d, s[%d:%d], 0 offen offset:%d" % (vr(DS + 2 * nt, 2), V_T + 4, SRD_DS, SRD_DS + 3, nt * 32))
    a("v_lshlrev_b32 v%d, 11, v%d" % (V_T + 5, VM))
    a("v_add_u32 v%d, v%d, v%d" % (V_T + 4, V_T + 4, V_T + 5))
    a("v_add_u32 v%d, 0x8000, v%d" % (V_T + 5, V_T + 4))
    for q in range(2):
        for nt in range(4):
            a("buffer_load_dwordx2 %s, v%d, s[%d:%d], 0 offen offset:%d" % (vr(XX + (q * 4 + nt) * 2, 2), V_T + 4 + q, SRD_X, SRD_X + 3, nt * 32))
    a("v_lshlrev_b32 v%d, 12, v%d" % (V_T + 6, VM))
    a("v_lshlrev_b32 v%d, 2, v%d" % (V_T + 7, VN))
    a("v_add_u32 v%d, v%d, v%d" % (V_T + 6, V_T + 6, V_T + 7))
    a("v_add_u32 v%d, 0x10000, v%d" % (V_T + 7, V_T + 6))
    AS = V_EPI + 32
    BS = V_EPI + 64
    TMP = V_EPI + 96
    a("s_cmp_eq_u32 s%d, 0" % S_KH)
    a("s_cbranch_scc0 K3_rd_1")
    for q in range(2):
        for nt in range(4):
            ti = q * 4 + nt
            a("ds_read_b128 %s, v%d offset:%d" % (vr(BS + ti * 4), V_T, (nt * 2 + q) * 1024))
    for q in range(2):
        for nt in range(4):
            ti = q * 4 + nt
            for r in range(4):
                a("v_accvgpr_read_b32 v%d, a%d" % (AS + ti * 4 + r, (nt * 4 + q) * 4 + r))
    a("s_waitcnt lgkmcnt(0)")
    for q in range(2):
        for nt in range(4):
            ti = q * 4 + nt
            for r in range(4):
                a("v_accvgpr_read_b32 v%d, a%d" % (TMP + r, 64 + (nt * 4 + q) * 4 + r))
            for r in range(4):
                a("v_add_f32 v%d, v%d, v%d" % (BS + ti * 4 + r, BS + ti * 4 + r, TMP + r))
    a("s_branch K3_rd_end")
    a.label("K3_rd_1")
    for q in range(2):
        for nt in range(4):
            ti = q * 4 + nt
            a("ds_read_b128 %s, v%d offset:%d" % (vr(AS + ti * 4), V_T, 8192 + (nt * 2 + q) * 1024))
            a("ds_read_b128 %s, v%d offset:%d" % (vr(BS + ti * 4), V_T, 16384 + (nt * 2 + q) * 1024))
    a("s_waitcnt lgkmcnt(0)")
    for q in range(2):
        for nt in range(4):
            ti = q * 4 + nt
            for r in range(4):
                a("v_accvgpr_read_b32 v%d, a%d" % (TMP + r, 64 + (nt * 4 + 2 + q) * 4 + r))
            for r in range(4):
                a("v_add_f32 v%d, v%d, v%d" % (BS + ti * 4 + r, BS + ti * 4 + r, TMP + r))
    a.label("K3_rd_end")
    a("s_waitcnt vmcnt(0)")
    for q in range(2):
        g = GG + q
        a("v_sub_f32 v%d, 1.0, v%d" % (TMP, g))
        a("v_cvt_pk_bf16_f32 v%d, v%d, v%d" % (TMP, TMP, TMP))
        a("v_lshlrev_b32 v%d, 16, v%d" % (TMP, TMP))
        for nt in range(4):
            ti = q * 4 + nt
            xa = XX + ti * 2
            da = DS + nt * 2
            o = AS + ti * 4
            b = BS + ti * 4
            for p in range(2):
                t0, t1, t2, t3 = TMP + 1, TMP + 2, TMP + 3, TMP + 4
                a("v_lshlrev_b32 v%d, 16, v%d" % (t0, xa + p))
                a("v_and_b32 v%d, 0xffff0000, v%d" % (t1, xa + p))
                a("v_lshlrev_b32 v%d, 16, v%d" % (t2, da + p))
                a("v_and_b32 v%d, 0xffff0000, v%d" % (t3, da + p))
                a("v_mul_f32 v%d, v%d, v%d" % (t0, t0, t2))
                a("v_mul_f32 v%d, v%d, v%d" % (t1, t1, t3))
                a("v_cvt_pk_bf16_f32 v%d, v%d, v%d" % (t2, t0, t1))
                a("v_lshlrev_b32 v%d, 16, v%d" % (t0, t2))
                a("v_and_b32 v%d, 0xffff0000, v%d" % (t1, t2))
                a("v_fma_f32 v%d, 2.0, v%d, v%d" % (o + 2 * p, o + 2 * p, t0))
                a("v_fma_f32 v%d, 2.0, v%d, v%d" % (o + 2 * p + 1, o + 2 * p + 1, t1))
                a("v_cvt_pk_bf16_f32 v%d, v%d, v%d" % (t2, b + 2 * p, b + 2 * p + 1))
                a("v_lshlrev_b32 v%d, 16, v%d" % (t0, t2))
                a("v_and_b32 v%d, 0xffff0000, v%d" % (t1, t2))
                a("v_mul_f32 v%d, v%d, v%d" % (t0, TMP, t0))
                a("v_mul_f32 v%d, v%d, v%d" % (t1, TMP, t1))
                a("v_cvt_pk_bf16_f32 v%d, v%d, v%d" % (t2, t0, t1))
                a("v_lshlrev_b32 v%d, 16, v%d" % (t0, t2))
                a("v_and_b32 v%d, 0xffff0000, v%d" % (t1, t2))
                a("v_mul_f32 v%d, v%d, v%d" % (o + 2 * p, g, o + 2 * p))
                a("v_mul_f32 v%d, v%d, v%d" % (o + 2 * p + 1, g, o + 2 * p + 1))
                a("v_add_f32 v%d, v%d, v%d" % (o + 2 * p, o + 2 * p, t0))
                a("v_add_f32 v%d, v%d, v%d" % (o + 2 * p + 1, o + 2 * p + 1, t1))
            a("buffer_store_dwordx4 %s, v%d, s[%d:%d], 0 offen offset:%d" % (vr(o), V_T + 6 + q, SRD_OUT, SRD_OUT + 3, nt * 64))
    a("s_waitcnt vmcnt(0)")
    stamp(a, 3, SRD_WS, 2)
    stamp(a, 4, SRD_WS, 2)
    a.label("K3_done")
    a("s_endpgm")
    return a.text()


DESC = kernel_desc(NAME, 384, 256)
LAUNCH = "; @launch kernel=%s grid=(256,1,1) block=(256,1,1) lds=%d" % (NAME, LDS_BYTES)
```

```python
from common import *

NAME = "k1_kernel"
BUF = 69632
XOFF, BMOFF, WOFF = 0, 32768, 40960
WMAT = 14336
LDS_BYTES = 2 * BUF

SRD_X, SRD_BM, SRD_W1, SRD_W3, SRD_WS, SRD_P = 8, 12, 16, 20, 24, 28
S_SX, S_SW, S_CNT, S_WAVE, S_MI, S_NJ = 40, 41, 42, 43, 44, 45
S_MASK = 46
S_M0X, S_M0B, S_M0W = 48, 49, 50
S_GROW = 51
SRD_G = 52
SRD_PF = 28
V_PF = 26
SRD_L2 = 56
S_L2OFF, S_L2INC = 60, 61
V_L2 = 30
V_VX = 2
V_VB = 10
V_VW = 12
V_VA = 16
V_VBM = 20
V_VWB = 24
V_T = 32
V_A = 48
V_RING = 80
NSLOT = 6
PD = 4
V_EPI = 104
V_RAW = 214
ACCV = 224


def acc(j, mt):
    idx = j * 4 + mt
    if idx < 64:
        return ("a", idx * 4)
    return ("v", ACCV + (idx - 64) * 4)


def accs(j, mt):
    k, b = acc(j, mt)
    return "%s[%d:%d]" % (k, b, b + 3)


def gen():
    a = Asm()
    a("s_cmp_ge_u32 s2, 256")
    a("s_cbranch_scc1 K1_done")
    load_kernargs(a)
    a("v_lshrrev_b32 v1, 6, v0")
    a("s_nop 0")
    a("v_readfirstlane_b32 s%d, v1" % S_WAVE)
    a("s_and_b32 s%d, s2, 7" % S_NJ)
    a("s_lshl_b32 s%d, s%d, 2" % (S_NJ, S_NJ))
    a("s_lshr_b32 s3, s2, 3")
    a("s_and_b32 s3, s3, 3")
    a("s_add_u32 s%d, s%d, s3" % (S_NJ, S_NJ))
    a("s_lshr_b32 s%d, s2, 5" % S_MI)
    a("v_and_b32 v1, 63, v0")
    a("s_waitcnt lgkmcnt(0)")
    make_srd(a, SRD_X, KA['x'], L * D * 2)
    make_srd(a, SRD_W1, KA['w1'], D * F * 2)
    make_srd(a, SRD_W3, KA['w3'], D * F * 2)
    make_srd(a, SRD_WS, KA['ws'], WS_BYTES)
    stamp(a, 0, SRD_WS, 0)
    a("s_cmp_lt_u32 s%d, 2" % S_WAVE)
    a("s_cselect_b32 s%d, s%d, s%d" % (SRD_BM, KA['bre'], KA['bim']))
    a("s_cselect_b32 s%d, s%d, s%d" % (SRD_BM + 1, KA['bre'] + 1, KA['bim'] + 1))
    a("s_and_b32 s%d, s%d, 0xffff" % (SRD_BM + 1, SRD_BM + 1))
    a("s_mov_b32 s%d, 0x%x" % (SRD_BM + 2, P * D * 2))
    a("s_mov_b32 s%d, 0x00020000" % (SRD_BM + 3))
    a("v_lshrrev_b32 v%d, 3, v1" % (V_T + 1))
    a("v_and_b32 v%d, 7, v1" % V_T)
    a("v_xor_b32 v%d, v%d, v%d" % (V_T, V_T, V_T + 1))
    a("v_lshlrev_b32 v%d, 4, v%d" % (V_T, V_T))
    a("v_lshlrev_b32 v%d, 11, v%d" % (V_T + 1, V_T + 1))
    a("v_add_u32 v%d, v%d, v%d" % (V_T, V_T, V_T + 1))
    a("s_lshl_b32 s3, s%d, 8" % S_MI)
    a("s_lshl_b32 s4, s%d, 6" % S_WAVE)
    a("s_add_u32 s3, s3, s4")
    a("s_lshl_b32 s3, s3, 11")
    for i in range(8):
        a("s_add_u32 s4, s3, 0x%x" % (i * 8 * 2048 - (i % 4) * 1024))
        a("v_add_u32 v%d, s4, v%d" % (V_VX + i, V_T))
    a("s_lshl_b32 s3, s%d, 5" % S_NJ)
    a("s_and_b32 s4, s%d, 1" % S_WAVE)
    a("s_lshl_b32 s4, s4, 4")
    a("s_add_u32 s3, s3, s4")
    a("s_lshl_b32 s3, s3, 11")
    for i in range(2):
        a("s_add_u32 s4, s3, 0x%x" % (i * 8 * 2048 - i * 1024))
        a("v_add_u32 v%d, s4, v%d" % (V_VB + i, V_T))
    a("v_mul_u32_u24 v%d, 37, v1" % V_T)
    a("v_lshrrev_b32 v%d, 9, v%d" % (V_T, V_T))
    a("v_mul_u32_u24 v%d, 14, v%d" % (V_T + 1, V_T))
    a("v_sub_u32 v%d, v1, v%d" % (V_T + 1, V_T + 1))
    a("v_lshlrev_b32 v%d, 4, v%d" % (V_T + 1, V_T + 1))
    a("s_movk_i32 s4, 0x1c00")
    a("v_mul_lo_u32 v%d, s4, v%d" % (V_T, V_T))
    a("v_add_u32 v%d, v%d, v%d" % (V_T, V_T, V_T + 1))
    a("s_mul_i32 s3, s%d, 224" % S_NJ)
    a("s_lshr_b32 s5, s%d, 1" % S_WAVE)
    a("s_lshl_b32 s5, s5, 5")
    a("s_and_b32 s6, s%d, 1" % S_WAVE)
    a("s_lshl_b32 s6, s6, 2")
    a("s_add_u32 s5, s5, s6")
    a("s_mul_i32 s5, s5, 7168")
    a("s_add_u32 s5, s5, s3")
    for t in range(4):
        a("s_add_u32 s6, s5, %d" % (t * 8 * 7168 - t * 896))
        a("v_add_u32 v%d, s6, v%d" % (V_VW + t, V_T))
    a("s_mov_b32 s%d, -1" % S_MASK)
    a("s_mov_b32 s%d, 0x00ffffff" % (S_MASK + 1))
    a("s_lshl_b32 s%d, s%d, 13" % (S_M0X, S_WAVE))
    a("s_lshl_b32 s%d, s%d, 11" % (S_M0B, S_WAVE))
    a("s_add_u32 s%d, s%d, %d" % (S_M0B, S_M0B, BMOFF))
    a("s_mul_i32 s%d, s%d, 3584" % (S_M0W, S_WAVE))
    a("s_add_u32 s%d, s%d, %d" % (S_M0W, S_M0W, WOFF))
    a("s_mov_b32 s%d, 0" % S_SX)
    a("s_mov_b32 s%d, 0" % S_SW)

    def dma(idx, b):
        tag = "dma%d" % b
        if idx < 8:
            if idx % 4 == 0:
                a("s_add_u32 m0, s%d, %d" % (S_M0X, b * BUF + (idx // 4) * 4096))
                a("s_nop 0")
            a.vm("buffer_load_dwordx4 v%d, s[%d:%d], s%d offen offset:%d lds" % (V_VX + idx, SRD_X, SRD_X + 3, S_SX, (idx % 4) * 1024), tag)
        elif idx < 10:
            if idx == 8:
                a("s_add_u32 m0, s%d, %d" % (S_M0B, b * BUF))
                a("s_nop 0")
            a.vm("buffer_load_dwordx4 v%d, s[%d:%d], s%d offen offset:%d lds" % (V_VB + idx - 8, SRD_BM, SRD_BM + 3, S_SX, (idx - 8) * 1024), tag)
        else:
            mat, t = (idx - 10) // 4, (idx - 10) % 4
            srd = SRD_W1 if mat == 0 else SRD_W3
            if t == 0:
                a("s_add_u32 m0, s%d, %d" % (S_M0W, b * BUF + mat * WMAT))
            a("s_mov_b64 exec, s[%d:%d]" % (S_MASK, S_MASK + 1))
            a.vm("buffer_load_dwordx4 v%d, s[%d:%d], s%d offen offset:%d lds" % (V_VW + t, srd, srd + 3, S_SW, t * 896), tag)
            a("s_mov_b64 exec, -1")
        if idx == 17:
            a("s_add_u32 s%d, s%d, 128" % (S_SX, S_SX))
            a("s_add_u32 s%d, s%d, 0x%x" % (S_SW, S_SW, 64 * 7168))

    def l2pf():
        return
        a.vm("buffer_load_dword v%d, v%d, s[%d:%d], s%d offen" % (V_PF + 3, V_L2, SRD_L2, SRD_L2 + 3, S_L2OFF), "pf")
        a("s_add_u32 s%d, s%d, s%d" % (S_L2OFF, S_L2OFF, S_L2INC))

    for i in range(18):
        dma(i, 0)
    a("s_lshl_b32 s3, s%d, 5" % S_NJ)
    a("v_and_b32 v%d, 15, v0" % V_T)
    a("v_add_u32 v%d, s3, v%d" % (V_T, V_T))
    a("v_lshlrev_b32 v%d, 1, v%d" % (V_T, V_T))
    a("v_and_b32 v%d, 31, v0" % (V_T + 1))
    a("v_add_u32 v%d, s3, v%d" % (V_T + 1, V_T + 1))
    a("v_lshlrev_b32 v%d, 1, v%d" % (V_T + 1, V_T + 1))
    for i, nm in enumerate(['lre', 'lim', 'ldt']):
        sp = SRD_P + 4 * i
        make_srd(a, sp, KA[nm], P * 2)
        a.vm("buffer_load_ushort v%d, v%d, s[%d:%d], 0 offen" % (V_RAW + i, V_T, sp, sp + 3), "raw")
        a.vm("buffer_load_ushort v%d, v%d, s[%d:%d], 0 offen offset:32" % (V_RAW + 3 + i, V_T, sp, sp + 3), "raw")
        a.vm("buffer_load_ushort v%d, v%d, s[%d:%d], 0 offen" % (V_RAW + 6 + i, V_T + 1, sp, sp + 3), "raw")
    GX = V_EPI
    GW = V_EPI + 16
    make_srd(a, SRD_G, KA['gw'], D * 2)
    a("v_lshlrev_b32 v%d, 4, v1" % V_T)
    a.vm("buffer_load_dwordx4 %s, v%d, s[%d:%d], 0 offen" % (vr(GW), V_T, SRD_G, SRD_G + 3), "g")
    a.vm("buffer_load_dwordx4 %s, v%d, s[%d:%d], 0 offen offset:1024" % (vr(GW + 4), V_T, SRD_G, SRD_G + 3), "g")
    a("s_lshl_b32 s3, s%d, 8" % S_MI)
    a("s_lshl_b32 s4, s%d, 3" % S_NJ)
    a("s_add_u32 s3, s3, s4")
    a("s_lshl_b32 s4, s%d, 1" % S_WAVE)
    a("s_add_u32 s%d, s3, s4" % S_GROW)
    a("s_lshl_b32 s3, s%d, 11" % S_GROW)
    a("v_add_u32 v%d, s3, v%d" % (V_T + 1, V_T))
    for q in range(4):
        a.vm("buffer_load_dwordx4 %s, v%d, s[%d:%d], 0 offen offset:%d" % (vr(GX + 4 * q), V_T + 1, SRD_X, SRD_X + 3, q * 1024), "g")
    for i in range(8):
        dma(i, 1)
    make_srd(a, SRD_PF, KA['w2'], F * D * 2)
    make_srd(a, SRD_PF + 4, KA['cre'], D * P * 2)
    make_srd(a, SRD_PF + 8, KA['cim'], D * P * 2)
    a("s_lshl_b32 s3, s2, 2")
    a("s_add_u32 s3, s3, s%d" % S_WAVE)
    a("s_mul_i32 s4, s3, 56")
    a("v_add_u32 v%d, s4, v1" % V_T)
    a("v_lshlrev_b32 v%d, 7, v%d" % (V_T, V_T))
    a("v_cmp_gt_u32 vcc, 56, v1")
    a("v_mov_b32 v%d, -1" % (V_T + 1))
    a("v_cndmask_b32 v%d, v%d, v%d, vcc" % (V_T, V_T + 1, V_T))
    a.vm("buffer_load_dword v%d, v%d, s[%d:%d], 0 offen" % (V_PF, V_T, SRD_PF, SRD_PF + 3), "pf")
    a("s_lshl_b32 s4, s3, 4")
    a("v_and_b32 v%d, 15, v1" % V_T)
    a("v_add_u32 v%d, s4, v%d" % (V_T, V_T))
    a("v_lshlrev_b32 v%d, 7, v%d" % (V_T, V_T))
    a.vm("buffer_load_dword v%d, v%d, s[%d:%d], 0 offen" % (V_PF + 1, V_T, SRD_PF + 4, SRD_PF + 7), "pf")
    a.vm("buffer_load_dword v%d, v%d, s[%d:%d], 0 offen" % (V_PF + 2, V_T, SRD_PF + 8, SRD_PF + 11), "pf")
    a("s_cmp_eq_u32 s%d, 0" % S_WAVE)
    a("s_cbranch_scc0 K1_pf_1")
    for i in range(4):
        a("s_mov_b32 s%d, s%d" % (SRD_L2 + i, SRD_X + i))
    a("s_and_b32 s3, s%d, 3" % S_NJ)
    a("s_lshl_b32 s3, s3, 6")
    a("s_lshl_b32 s4, s%d, 8" % S_MI)
    a("s_add_u32 s3, s3, s4")
    a("v_add_u32 v%d, s3, v1" % V_L2)
    a("v_lshlrev_b32 v%d, 11, v%d" % (V_L2, V_L2))
    a("s_movk_i32 s%d, 128" % S_L2INC)
    a("s_branch K1_pf_end")
    a.label("K1_pf_1")
    a("s_cmp_eq_u32 s%d, 3" % S_WAVE)
    a("s_cbranch_scc1 K1_pf_3")
    a("s_cmp_eq_u32 s%d, 1" % S_WAVE)
    for i in range(4):
        a("s_cselect_b32 s%d, s%d, s%d" % (SRD_L2 + i, SRD_W1 + i, SRD_W3 + i))
    a("v_mul_u32_u24 v%d, 43, v1" % V_T)
    a("v_lshrrev_b32 v%d, 7, v%d" % (V_T, V_T))
    a("v_mul_u32_u24 v%d, 3, v%d" % (V_T + 1, V_T))
    a("v_sub_u32 v%d, v1, v%d" % (V_T + 1, V_T + 1))
    a("s_lshl_b32 s3, s%d, 3" % S_MI)
    a("v_add_u32 v%d, s3, v%d" % (V_T, V_T))
    a("s_movk_i32 s4, 0x1c00")
    a("v_mul_lo_u32 v%d, s4, v%d" % (V_T, V_T))
    a("v_lshlrev_b32 v%d, 7, v%d" % (V_T + 1, V_T + 1))
    a("s_mul_i32 s3, s%d, 224" % S_NJ)
    a("s_and_b32 s3, s3, 0xffffff80")
    a("v_add3_u32 v%d, v%d, v%d, s3" % (V_L2, V_T, V_T + 1))
    a("v_cmp_gt_u32 vcc, 24, v1")
    a("v_mov_b32 v%d, -1" % V_T)
    a("v_cndmask_b32 v%d, v%d, v%d, vcc" % (V_L2, V_T, V_L2))
    a("s_mov_b32 s%d, 0x%x" % (S_L2INC, 64 * 7168))
    a("s_branch K1_pf_end")
    a.label("K1_pf_3")
    for i in range(4):
        a("s_mov_b32 s%d, s%d" % (SRD_L2 + i, SRD_BM + i))
    a("s_lshl_b32 s3, s%d, 5" % S_NJ)
    a("s_lshl_b32 s4, s%d, 2" % S_MI)
    a("s_add_u32 s3, s3, s4")
    a("v_and_b32 v%d, 3, v1" % V_L2)
    a("v_add_u32 v%d, s3, v%d" % (V_L2, V_L2))
    a("v_lshlrev_b32 v%d, 11, v%d" % (V_L2, V_L2))
    a("s_movk_i32 s%d, 128" % S_L2INC)
    a.label("K1_pf_end")
    a("s_mov_b32 s%d, s%d" % (S_L2OFF, S_L2INC))
    for i in range(3):
        l2pf()
    a("v_lshrrev_b32 v%d, 4, v1" % V_T)
    a("v_and_b32 v%d, 7, v1" % (V_T + 1))
    a("v_xor_b32 v%d, v%d, v%d" % (V_T, V_T, V_T + 1))
    a("v_lshlrev_b32 v%d, 4, v%d" % (V_T, V_T))
    a("v_and_b32 v%d, 15, v1" % (V_T + 1))
    a("v_lshlrev_b32 v%d, 7, v%d" % (V_T + 1, V_T + 1))
    a("v_add_u32 v%d, v%d, v%d" % (V_T, V_T, V_T + 1))
    a("v_xor_b32 v%d, 64, v%d" % (V_T + 1, V_T))
    a("s_lshl_b32 s3, s%d, 13" % S_WAVE)
    for b in range(2):
        for kk in range(2):
            a("s_add_u32 s4, s3, %d" % (b * BUF + XOFF))
            a("v_add_u32 v%d, s4, v%d" % (V_VA + 2 * b + kk, V_T + kk))
            a("v_add_u32 v%d, 0x%x, v%d" % (V_VBM + 2 * b + kk, b * BUF + BMOFF, V_T + kk))
    a("v_lshrrev_b32 v%d, 4, v1" % V_T)
    a("v_lshlrev_b32 v%d, 2, v%d" % (V_T, V_T))
    a("v_and_b32 v%d, 15, v1" % (V_T + 1))
    a("v_lshrrev_b32 v%d, 2, v%d" % (V_T + 1, V_T + 1))
    a("v_add_u32 v%d, v%d, v%d" % (V_T, V_T, V_T + 1))
    a("v_mul_u32_u24 v%d, 0xe0, v%d" % (V_T, V_T))
    a("v_and_b32 v%d, 3, v1" % (V_T + 1))
    a("v_lshlrev_b32 v%d, 3, v%d" % (V_T + 1, V_T + 1))
    a("v_add_u32 v%d, v%d, v%d" % (V_T, V_T, V_T + 1))
    for b in range(2):
        a("v_add_u32 v%d, 0x%x, v%d" % (V_VWB + b, b * BUF + WOFF, V_T))

    def read_frag(b, ts, slotctr):
        kk, jj = ts // 18, ts % 18
        slot = V_RING + (slotctr % NSLOT) * 4
        tag = "f%d" % (slotctr % NSLOT)
        if jj < 4:
            a.lds("ds_read_b128 %s, v%d offset:%d" % (vr(slot), V_VBM + 2 * b + kk, jj * 2048), tag)
        else:
            idx = jj - 4
            mat, t = idx // 7, idx % 7
            for h in range(2):
                a.lds("ds_read_b64_tr_b16 %s, v%d offset:%d" % (vr(slot + 2 * h, 2), V_VWB + b, mat * WMAT + kk * 7168 + h * 3584 + t * 32), tag)

    def read_a(b, kk, mt):
        a.lds("ds_read_b128 %s, v%d offset:%d" % (vr(V_A + kk * 16 + mt * 4), V_VA + 2 * b + kk, mt * 2048), "A%d" % kk)

    for i in range(256):
        a("v_accvgpr_write_b32 a%d, 0" % i)
    for i in range(32):
        a("v_mov_b32 v%d, 0" % (ACCV + i))
    a.wait_vm("g")
    GS = V_EPI + 24
    for row in range(2):
        a("v_mov_b32 v%d, 0" % (GS + row))
        for q in range(8):
            xs, gs = GX + row * 8 + q, GW + q
            a("v_lshlrev_b32 v%d, 16, v%d" % (V_T, xs))
            a("v_lshlrev_b32 v%d, 16, v%d" % (V_T + 1, gs))
            a("v_and_b32 v%d, 0xffff0000, v%d" % (V_T + 2, xs))
            a("v_and_b32 v%d, 0xffff0000, v%d" % (V_T + 3, gs))
            a("v_mul_f32 v%d, v%d, v%d" % (V_T, V_T, V_T + 1))
            a("v_mul_f32 v%d, v%d, v%d" % (V_T + 2, V_T + 2, V_T + 3))
            a("v_cvt_pk_bf16_f32 v%d, v%d, v%d" % (V_T, V_T, V_T + 2))
            a("v_lshlrev_b32 v%d, 16, v%d" % (V_T + 1, V_T))
            a("v_and_b32 v%d, 0xffff0000, v%d" % (V_T + 2, V_T))
            a("v_add_f32 v%d, v%d, v%d" % (GS + row, GS + row, V_T + 1))
            a("v_add_f32 v%d, v%d, v%d" % (GS + row, GS + row, V_T + 2))
    for k in range(6):
        a("v_xor_b32 v%d, %d, v1" % (V_T, 1 << k))
        a("v_lshlrev_b32 v%d, 2, v%d" % (V_T, V_T))
        a("ds_bpermute_b32 v%d, v%d, v%d" % (V_T + 1, V_T, GS))
        a("ds_bpermute_b32 v%d, v%d, v%d" % (V_T + 2, V_T, GS + 1))
        a("s_waitcnt lgkmcnt(0)")
        a("v_add_f32 v%d, v%d, v%d" % (GS, GS, V_T + 1))
        a("v_add_f32 v%d, v%d, v%d" % (GS + 1, GS + 1, V_T + 2))
    for row in range(2):
        g = GS + row
        a("v_cvt_pk_bf16_f32 v%d, v%d, v%d" % (g, g, g))
        a("v_lshlrev_b32 v%d, 16, v%d" % (g, g))
        a("v_mul_f32 v%d, 0x%x, v%d" % (g, LOG2E | 0x80000000, g))
        a("v_exp_f32 v%d, v%d" % (g, g))
        a("s_nop 0")
        a("v_add_f32 v%d, 1.0, v%d" % (g, g))
        a("v_rcp_f32 v%d, v%d" % (g, g))
        a("s_nop 0")
        a("v_cvt_pk_bf16_f32 v%d, v%d, v%d" % (g, g, g))
        a("v_lshlrev_b32 v%d, 16, v%d" % (g, g))
    a("s_lshl_b32 s3, s%d, 2" % S_GROW)
    a("s_add_u32 s3, s3, 0x%x" % G_OFF)
    a("v_mov_b32 v%d, s3" % V_T)
    a("v_cmp_eq_u32 vcc, 0, v1")
    a("s_and_saveexec_b64 s[4:5], vcc")
    a.vm("buffer_store_dwordx2 %s, v%d, s[%d:%d], 0 offen" % (vr(GS, 2), V_T, SRD_WS, SRD_WS + 3), "gst")
    a("s_mov_b64 exec, s[4:5]")
    a.vq = [t for t in a.vq]
    a("s_barrier")
    stamp(a, 1, SRD_WS, 0)
    for jj in range(PD):
        read_frag(0, jj, jj)
        read_a(0, 0, jj)
    a("s_mov_b32 s%d, 0" % S_CNT)
    lq0, vq0 = list(a.lq), [t for t in a.vq if t not in ('gst', 'pf')]
    a.label("K1_loop")
    for b in range(2):
        nb = 1 - b
        for ts in range(36):
            kk, j = ts // 18, ts % 18
            ctr = b * 36 + ts
            if ts < 5:
                dma(8 + 2 * ts, nb)
                dma(9 + 2 * ts, nb)
            if ts == 5:
                l2pf()
            if ts == 32:
                a.wait_lds_all()
                a.wait_vm("dma%d" % nb)
                a("s_barrier")
            if ts >= 32:
                dma(2 * (ts - 32), b)
                dma(2 * (ts - 32) + 1, b)
            nts = ts + PD
            if nts < 36:
                read_frag(b, nts, ctr + PD)
            else:
                read_frag(nb, nts - 36, ctr + PD)
            if 14 <= ts < 18:
                read_a(b, 1, ts - 14)
            if ts >= 32:
                read_a(nb, 0, ts - 32)
            tags = ["f%d" % (ctr % NSLOT)]
            if j == 0:
                tags.append("A%d" % kk)
            a.wait_lds(tags)
            slot = vr(V_RING + (ctr % NSLOT) * 4)
            for mt in range(4):
                xa = vr(V_A + kk * 16 + mt * 4)
                if j < 4:
                    a("v_mfma_f32_16x16x32_bf16 %s, %s, %s, %s" % (accs(j, mt), xa, slot, accs(j, mt)))
                else:
                    a("v_mfma_f32_16x16x32_bf16 %s, %s, %s, %s" % (accs(j, mt), slot, xa, accs(j, mt)))
    assert a.lq == lq0 and [t for t in a.vq if t != 'pf'] == vq0, (a.lq, lq0, a.vq, vq0)
    a("s_add_u32 s%d, s%d, 1" % (S_CNT, S_CNT))
    a("s_cmp_lt_u32 s%d, 8" % S_CNT)
    a("s_cbranch_scc1 K1_loop")
    a.wait_vm_all()
    a.wait_lds_all()
    a("s_barrier")
    a("s_nop 7")
    stamp(a, 2, SRD_WS, 0)

    SCS = 2064
    ESEG = 0
    SCB = 4096
    PR = V_EPI
    LR, LI = 216, 217
    P32 = 220
    CA = 222
    PW32 = V_T + 14
    for i in range(2):
        ssm_params(a, V_RAW + 3 * i, PR + 4 * i, V_T)
    ssm_params(a, V_RAW + 6, PR + 8, V_T)
    a("v_mov_b32 v%d, v%d" % (LR, PR + 8))
    a("v_mov_b32 v%d, v%d" % (LI, PR + 9))
    a("v_and_b32 v%d, 15, v1" % V_T)
    a("s_movk_i32 s3, %d" % SCS)
    a("v_mul_lo_u32 v%d, s3, v%d" % (V_T, V_T))
    a("v_lshrrev_b32 v%d, 4, v1" % (V_T + 1))
    a("v_lshlrev_b32 v%d, 5, v%d" % (V_T + 1, V_T + 1))
    a("v_add_u32 v%d, v%d, v%d" % (V_T, V_T, V_T + 1))
    a("s_lshl_b32 s3, s%d, 9" % S_WAVE)
    a("v_add_u32 v%d, s3, v%d" % (V_T, V_T))
    a("v_add_u32 v%d, %d, v%d" % (V_T, SCB, V_T))
    W = V_EPI + 16
    for ct in range(2):
        cr, ci = PR + 4 * ct + 2, PR + 4 * ct + 3
        for mt in range(4):
            _, ur = acc(ct, mt)
            _, ui = acc(2 + ct, mt)
            WW = W + (mt & 1) * 16
            for r in range(4):
                a("v_accvgpr_read_b32 v%d, a%d" % (WW + 8 + r, ur + r))
                a("v_accvgpr_read_b32 v%d, a%d" % (WW + 12 + r, ui + r))
            for r in range(4):
                a("v_mul_f32 v%d, v%d, v%d" % (WW + 2 * r, cr, WW + 8 + r))
                a("v_mul_f32 v%d, v%d, v%d" % (WW + 2 * r + 1, cr, WW + 12 + r))
                a("v_fma_f32 v%d, -v%d, v%d, v%d" % (WW + 2 * r, ci, WW + 12 + r, WW + 2 * r))
                a("v_fma_f32 v%d, v%d, v%d, v%d" % (WW + 2 * r + 1, ci, WW + 8 + r, WW + 2 * r + 1))
            off = ct * 16 * SCS + mt * 128
            a("ds_write_b128 v%d, %s offset:%d" % (V_T, vr(WW), off))
            a("ds_write_b128 v%d, %s offset:%d" % (V_T, vr(WW + 4), off + 16))
    a("s_waitcnt lgkmcnt(0)")
    a("s_barrier")
    VSEG = V_T + 13
    a("v_and_b32 v%d, 31, v0" % V_T)
    a("s_movk_i32 s3, %d" % SCS)
    a("v_mul_lo_u32 v%d, s3, v%d" % (V_T, V_T))
    a("v_lshrrev_b32 v%d, 5, v0" % VSEG)
    a("v_lshlrev_b32 v%d, 8, v%d" % (V_T + 2, VSEG))
    a("v_add_u32 v%d, v%d, v%d" % (V_T, V_T, V_T + 2))
    a("v_add_u32 v%d, %d, v%d" % (V_T, SCB, V_T))
    H = 152
    for i in range(16):
        a("ds_read_b128 %s, v%d offset:%d" % (vr(H + 4 * i), V_T, i * 16))
    TT = V_T + 4
    TT2 = V_T + 6
    a("s_waitcnt lgkmcnt(0)")
    for i in range(1, 16):
        s1, s2 = Asm(), Asm()
        cfma(s1, H + 2 * i, H + 2 * i + 1, LR, LI, H + 2 * i - 2, H + 2 * i - 1, H + 2 * i, H + 2 * i + 1, TT)
        k = 16 + i
        cfma(s2, H + 2 * k, H + 2 * k + 1, LR, LI, H + 2 * k - 2, H + 2 * k - 1, H + 2 * k, H + 2 * k + 1, TT2)
        for x, y in zip(s1.lines, s2.lines):
            a.lines.append(x)
            a.lines.append(y)
    P16 = 218
    a("v_mov_b32 v%d, v%d" % (P16, LR))
    a("v_mov_b32 v%d, v%d" % (P16 + 1, LI))
    for i in range(4):
        cmul(a, P16, P16 + 1, P16, P16 + 1, P16, P16 + 1, TT)
    E32 = V_EPI + 40
    cfma(a, E32, E32 + 1, P16, P16 + 1, H + 30, H + 31, H + 62, H + 63, TT)
    a("v_lshlrev_b32 v%d, 3, v0" % (V_T + 2))
    a("ds_write_b64 v%d, %s offset:%d" % (V_T + 2, vr(E32, 2), ESEG))
    cmul(a, P32, P32 + 1, P16, P16 + 1, P16, P16 + 1, TT)
    a("s_waitcnt lgkmcnt(0)")
    a("s_barrier")
    AC = V_EPI
    PWX = V_EPI + 2
    EE = V_EPI + 4
    a("v_and_b32 v%d, 31, v0" % (V_T + 2))
    a("v_lshlrev_b32 v%d, 3, v%d" % (V_T + 2, V_T + 2))
    for s_ in range(8):
        a("ds_read_b64 %s, v%d offset:%d" % (vr(EE + 2 * s_, 2), V_T + 2, ESEG + s_ * 256))
    a("v_mov_b32 v%d, 0" % AC)
    a("v_mov_b32 v%d, 0" % (AC + 1))
    a("v_mov_b32 v%d, 0" % CA)
    a("v_mov_b32 v%d, 0" % (CA + 1))
    a("v_mov_b32 v%d, 1.0" % PWX)
    a("v_mov_b32 v%d, 0" % (PWX + 1))
    a("v_mov_b32 v%d, 1.0" % PW32)
    a("v_mov_b32 v%d, 0" % (PW32 + 1))
    a("s_waitcnt lgkmcnt(0)")
    for s_ in range(8):
        if s_ > 0:
            cmul(a, PWX, PWX + 1, PWX, PWX + 1, P32, P32 + 1, TT)
            a("v_cmp_eq_u32 vcc, %d, v%d" % (s_, VSEG))
            a("s_nop 1")
            a("v_cndmask_b32 v%d, v%d, v%d, vcc" % (CA, CA, AC))
            a("v_cndmask_b32 v%d, v%d, v%d, vcc" % (CA + 1, CA + 1, AC + 1))
            a("v_cndmask_b32 v%d, v%d, v%d, vcc" % (PW32, PW32, PWX))
            a("v_cndmask_b32 v%d, v%d, v%d, vcc" % (PW32 + 1, PW32 + 1, PWX + 1))
        cfma(a, AC, AC + 1, P32, P32 + 1, AC, AC + 1, EE + 2 * s_, EE + 2 * s_ + 1, TT)
    a("s_lshl_b32 s3, s%d, 10" % S_MI)
    a("s_lshl_b32 s4, s%d, 5" % S_NJ)
    a("s_add_u32 s3, s3, s4")
    a("s_lshl_b32 s3, s3, 3")
    a("s_add_u32 s3, s3, 0x%x" % E_OFF)
    a("v_add_u32 v%d, s3, v%d" % (V_T + 2, V_T + 2))
    make_srd(a, SRD_P, KA['dbg'], 256)
    a("s_cmp_lg_u32 s%d, 0" % S_WAVE)
    a("s_cbranch_scc1 K1_pub_done")
    a("v_cmp_gt_u32 vcc, 32, v0")
    a("s_and_saveexec_b64 s[4:5], vcc")
    a("buffer_store_dwordx2 %s, v%d, s[%d:%d], 0 offen sc1" % (vr(AC, 2), V_T + 2, SRD_WS, SRD_WS + 3))
    a("s_mov_b64 exec, s[4:5]")
    a("s_waitcnt vmcnt(0)")
    a("s_lshl_b32 s3, 1, s%d" % S_MI)
    a("v_mov_b32 v%d, s3" % (V_T + 3))
    a("s_lshl_b32 s3, s%d, 2" % S_NJ)
    a("v_mov_b32 v%d, s3" % (V_T + 2))
    a("v_cmp_eq_u32 vcc, 0, v0")
    a("s_and_saveexec_b64 s[4:5], vcc")
    a("buffer_atomic_or v%d, v%d, s[%d:%d], 0 offen sc1" % (V_T + 3, V_T + 2, SRD_P, SRD_P + 3))
    a("s_mov_b64 exec, s[4:5]")
    a.label("K1_pub_done")
    stamp(a, 3, SRD_WS, 0)

    FFL = 73728
    SB = V_T + 8
    a("v_and_b32 v%d, 15, v1" % V_T)
    a("v_mul_u32_u24 v%d, 0xe0, v%d" % (V_T, V_T))
    a("v_lshrrev_b32 v%d, 4, v1" % (V_T + 1))
    a("v_lshlrev_b32 v%d, 3, v%d" % (V_T + 1, V_T + 1))
    a("v_add_u32 v%d, v%d, v%d" % (V_T, V_T, V_T + 1))
    a("s_mul_i32 s3, s%d, 14336" % S_WAVE)
    a("s_add_u32 s3, s3, %d" % FFL)
    a("v_add_u32 v%d, s3, v%d" % (SB, V_T))
    a("v_lshlrev_b32 v%d, 4, v1" % (SB + 1))
    a("v_add_u32 v%d, s3, v%d" % (SB + 1, SB + 1))
    a("s_mov_b32 s6, 0x%x" % (LOG2E | 0x80000000))
    a("s_mov_b32 s7, 0x%x" % (LOG2E | 0x80000000))
    def ffn_tile(t, mt, base):
        b_ = Asm()
        G, U, Tm = base, base + 4, base + 8
        kg, bg = acc(4 + t, mt)
        ku, bu = acc(11 + t, mt)
        for r in range(4):
            b_("v_accvgpr_read_b32 v%d, a%d" % (G + r, bg + r))
        if ku == 'a':
            for r in range(4):
                b_("v_accvgpr_read_b32 v%d, a%d" % (U + r, bu + r))
            us = U
        else:
            us = bu
        for p in range(2):
            b_("v_cvt_pk_bf16_f32 v%d, v%d, v%d" % (Tm + 8 + p, G + 2 * p, G + 2 * p + 1))
            b_("v_cvt_pk_bf16_f32 v%d, v%d, v%d" % (Tm + 10 + p, us + 2 * p, us + 2 * p + 1))
        for p in range(2):
            b_("v_lshlrev_b32 v%d, 16, v%d" % (G + 2 * p, Tm + 8 + p))
            b_("v_and_b32 v%d, 0xffff0000, v%d" % (G + 2 * p + 1, Tm + 8 + p))
        for p in range(2):
            b_("v_pk_mul_f32 %s, %s, s[6:7]" % (vr(Tm + 2 * p, 2), vr(G + 2 * p, 2)))
        for r in range(4):
            b_("v_exp_f32 v%d, v%d" % (Tm + r, Tm + r))
        for p in range(2):
            b_("v_lshlrev_b32 v%d, 16, v%d" % (U + 2 * p, Tm + 10 + p))
            b_("v_and_b32 v%d, 0xffff0000, v%d" % (U + 2 * p + 1, Tm + 10 + p))
        for p in range(2):
            b_("v_pk_add_f32 %s, %s, 1.0 op_sel_hi:[1,0]" % (vr(Tm + 2 * p, 2), vr(Tm + 2 * p, 2)))
        for r in range(4):
            b_("v_rcp_f32 v%d, v%d" % (Tm + r, Tm + r))
        b_("s_nop 0")
        for p in range(2):
            b_("v_pk_mul_f32 %s, %s, %s" % (vr(Tm + 2 * p, 2), vr(Tm + 2 * p, 2), vr(G + 2 * p, 2)))
        for p in range(2):
            b_("v_cvt_pk_bf16_f32 v%d, v%d, v%d" % (Tm + 8 + p, Tm + 2 * p, Tm + 2 * p + 1))
        for p in range(2):
            b_("v_lshlrev_b32 v%d, 16, v%d" % (Tm + 2 * p, Tm + 8 + p))
            b_("v_and_b32 v%d, 0xffff0000, v%d" % (Tm + 2 * p + 1, Tm + 8 + p))
        for p in range(2):
            b_("v_pk_mul_f32 %s, %s, %s" % (vr(Tm + 2 * p, 2), vr(Tm + 2 * p, 2), vr(U + 2 * p, 2)))
        for p in range(2):
            b_("v_cvt_pk_bf16_f32 v%d, v%d, v%d" % (base + 20 + p, Tm + 2 * p, Tm + 2 * p + 1))
        b_("ds_write_b64 v%d, %s offset:%d" % (SB, vr(base + 20, 2), mt * 3584 + t * 32))
        return b_.lines

    for t in range(7):
        for mp in range(2):
            l1 = ffn_tile(t, 2 * mp, V_EPI)
            l2 = ffn_tile(t, 2 * mp + 1, V_EPI + 24)
            assert len(l1) == len(l2)
            for x, y in zip(l1, l2):
                a.lines.append(x)
                a.lines.append(y)
    a("s_lshl_b32 s3, s%d, 8" % S_MI)
    a("s_lshl_b32 s4, s%d, 6" % S_WAVE)
    a("s_add_u32 s3, s3, s4")
    a("s_mul_i32 s3, s3, 7168")
    a("s_mul_i32 s4, s%d, 224" % S_NJ)
    a("s_add_u32 s3, s3, s4")
    a("s_add_u32 s3, s3, 0x%x" % HMID_OFF)
    a("s_movk_i32 s4, 0x1c00")
    a("s_waitcnt lgkmcnt(0)")
    for bt in range(2):
        for i in range(7):
            a("ds_read_b128 %s, v%d offset:%d" % (vr(V_EPI + i * 4), SB + 1, (bt * 7 + i) * 1024))
        for i in range(7):
            ad = V_EPI + 28 + i
            a("v_add_u32 v%d, %d, v1" % (V_T, (bt * 7 + i) * 64))
            a("v_mul_u32_u24 v%d, 0x925, v%d" % (V_T + 1, V_T))
            a("v_lshrrev_b32 v%d, 15, v%d" % (V_T + 1, V_T + 1))
            a("v_mul_u32_u24 v%d, 14, v%d" % (V_T + 2, V_T + 1))
            a("v_sub_u32 v%d, v%d, v%d" % (V_T, V_T, V_T + 2))
            a("v_lshlrev_b32 v%d, 4, v%d" % (V_T, V_T))
            a("v_mul_lo_u32 v%d, s4, v%d" % (V_T + 1, V_T + 1))
            a("v_add3_u32 v%d, v%d, v%d, s3" % (ad, V_T, V_T + 1))
        for i in range(7):
            a("s_waitcnt lgkmcnt(%d)" % (6 - i))
            a("buffer_store_dwordx4 %s, v%d, s[%d:%d], 0 offen" % (vr(V_EPI + i * 4), V_EPI + 28 + i, SRD_WS, SRD_WS + 3))
        a("s_nop 1")

    stamp(a, 4, SRD_WS, 0)
    a("s_lshl_b32 s3, 1, s%d" % S_MI)
    a("s_sub_u32 s3, s3, 1")
    a("s_lshl_b32 s4, s%d, 2" % S_NJ)
    a("v_mov_b32 v%d, s4" % (V_T + 2))
    a("s_mov_b32 s5, 0")
    a.label("K1_poll")
    a("buffer_load_dword v%d, v%d, s[%d:%d], 0 offen sc1" % (V_T + 3, V_T + 2, SRD_P, SRD_P + 3))
    a("s_waitcnt vmcnt(0)")
    a("v_readfirstlane_b32 s6, v%d" % (V_T + 3))
    a("s_and_b32 s6, s6, s3")
    a("s_cmp_eq_u32 s6, s3")
    a("s_cbranch_scc1 K1_poll_done")
    a("s_sleep 4")
    a("s_add_u32 s5, s5, 1")
    a("s_cmp_lt_u32 s5, 0x40000")
    a("s_cbranch_scc1 K1_poll")
    a.label("K1_poll_done")
    stamp(a, 5, SRD_WS, 0)
    EJ = V_EPI
    CIN = V_EPI + 16
    P256 = V_EPI + 18
    a("s_lshl_b32 s4, s%d, 8" % S_NJ)
    a("s_add_u32 s4, s4, 0x%x" % E_OFF)
    a("v_and_b32 v%d, 31, v0" % (V_T + 2))
    a("v_lshlrev_b32 v%d, 3, v%d" % (V_T + 2, V_T + 2))
    a("v_add_u32 v%d, s4, v%d" % (V_T + 2, V_T + 2))
    for j in range(7):
        a("buffer_load_dwordx2 %s, v%d, s[%d:%d], 0 offen sc1" % (vr(EJ + 2 * j, 2), V_T + 2, SRD_WS, SRD_WS + 3))
        if j < 6:
            a("v_add_u32 v%d, 0x2000, v%d" % (V_T + 2, V_T + 2))
    a("v_mov_b32 v%d, v%d" % (P256, P32))
    a("v_mov_b32 v%d, v%d" % (P256 + 1, P32 + 1))
    for i in range(3):
        cmul(a, P256, P256 + 1, P256, P256 + 1, P256, P256 + 1, TT)
    a("v_mov_b32 v%d, 0" % CIN)
    a("v_mov_b32 v%d, 0" % (CIN + 1))
    a("s_waitcnt vmcnt(0)")
    for j in range(7):
        a("s_cmp_le_u32 s%d, %d" % (S_MI, j))
        a("s_cbranch_scc1 K1_cin_done")
        cfma(a, CIN, CIN + 1, P256, P256 + 1, CIN, CIN + 1, EJ + 2 * j, EJ + 2 * j + 1, TT)
    a.label("K1_cin_done")
    cfma(a, CA, CA + 1, PW32, PW32 + 1, CIN, CIN + 1, CA, CA + 1, TT)
    HSL = 4096
    a("v_lshlrev_b32 v%d, 11, v%d" % (V_T + 3, VSEG))
    a("v_and_b32 v%d, 31, v0" % (V_T + 2))
    a("v_lshlrev_b32 v%d, 1, v%d" % (V_T + 2, V_T + 2))
    a("v_add_u32 v%d, v%d, v%d" % (V_T + 2, V_T + 2, V_T + 3))
    PW = V_EPI + 24
    a("v_mov_b32 v%d, v%d" % (PW, LR))
    a("v_mov_b32 v%d, v%d" % (PW + 1, LI))
    CB = V_EPI + 22
    cfma(a, CB, CB + 1, P16, P16 + 1, CA, CA + 1, H + 30, H + 31, TT)
    for i in range(16):
        s1, s2, s3_ = Asm(), Asm(), Asm()
        cfma(s1, H + 2 * i, H + 2 * i + 1, PW, PW + 1, CA, CA + 1, H + 2 * i, H + 2 * i + 1, TT)
        s1("v_cvt_pk_bf16_f32 v%d, v%d, -v%d" % (H + 2 * i, H + 2 * i, H + 2 * i + 1))
        s1("ds_write_b16 v%d, v%d offset:%d" % (V_T + 2, H + 2 * i, HSL + i * 64))
        s1("ds_write_b16_d16_hi v%d, v%d offset:%d" % (V_T + 2, H + 2 * i, HSL + 16384 + i * 64))
        k = 16 + i
        cfma(s2, H + 2 * k, H + 2 * k + 1, PW, PW + 1, CB, CB + 1, H + 2 * k, H + 2 * k + 1, TT2)
        s2("v_cvt_pk_bf16_f32 v%d, v%d, -v%d" % (H + 2 * k, H + 2 * k, H + 2 * k + 1))
        s2("ds_write_b16 v%d, v%d offset:%d" % (V_T + 2, H + 2 * k, HSL + k * 64))
        s2("ds_write_b16_d16_hi v%d, v%d offset:%d" % (V_T + 2, H + 2 * k, HSL + 16384 + k * 64))
        PN = PW + 4 if (i % 2 == 0) else PW - 4
        if i < 15:
            s3_("v_mul_f32 v%d, v%d, v%d" % (PN, PW, LR))
            s3_("v_mul_f32 v%d, v%d, v%d" % (PN + 1, PW, LI))
            s3_("v_fma_f32 v%d, -v%d, v%d, v%d" % (PN, PW + 1, LI, PN))
            s3_("v_fma_f32 v%d, v%d, v%d, v%d" % (PN + 1, PW + 1, LR, PN + 1))
        for q in range(8):
            a.lines.append(s1.lines[q])
            a.lines.append(s2.lines[q])
            if q < len(s3_.lines):
                a.lines.append(s3_.lines[q])
        PW = PN
    a("s_waitcnt lgkmcnt(0)")
    a("s_barrier")
    a("s_lshl_b32 s3, s%d, 12" % S_WAVE)
    a("v_lshlrev_b32 v%d, 4, v1" % (V_T + 2))
    a("v_add_u32 v%d, s3, v%d" % (V_T + 2, V_T + 2))
    for i in range(8):
        a("ds_read_b128 %s, v%d offset:%d" % (vr(V_EPI + 4 * i), V_T + 2, HSL + (i // 4) * 16384 + (i % 4) * 1024))
    a("s_lshl_b32 s3, s%d, 8" % S_MI)
    a("s_lshl_b32 s4, s%d, 6" % S_WAVE)
    a("s_add_u32 s3, s3, s4")
    a("s_lshl_b32 s3, s3, 12")
    a("s_lshl_b32 s4, s%d, 6" % S_NJ)
    a("s_add_u32 s3, s3, s4")
    a("s_add_u32 s3, s3, 0x%x" % HS_OFF)
    a("v_lshrrev_b32 v%d, 2, v1" % (V_T + 3))
    a("v_lshlrev_b32 v%d, 12, v%d" % (V_T + 3, V_T + 3))
    a("v_and_b32 v%d, 3, v1" % (V_T + 2))
    a("v_lshlrev_b32 v%d, 4, v%d" % (V_T + 2, V_T + 2))
    a("v_add3_u32 v%d, v%d, v%d, s3" % (V_T + 2, V_T + 2, V_T + 3))
    for i in range(8):
        a("s_waitcnt lgkmcnt(%d)" % (7 - i))
        a("buffer_store_dwordx4 %s, v%d, s[%d:%d], 0 offen offset:%d" % (vr(V_EPI + 4 * i), V_T + 2, SRD_WS, SRD_WS + 3, (i // 4) * 2048))
        if i % 4 == 3:
            a("v_subrev_u32 v%d, 0x30000, v%d" % (V_T + 2, V_T + 2))
        else:
            a("v_add_u32 v%d, 0x10000, v%d" % (V_T + 2, V_T + 2))
    if STAMP:
        a("s_waitcnt vmcnt(0)")
    stamp(a, 6, SRD_WS, 0)
    a.label("K1_done")
    a("s_endpgm")
    return a.text()


DESC = kernel_desc(NAME, 512, 256)
LAUNCH = "; @launch kernel=%s grid=(256,1,1) block=(256,1,1) lds=%d" % (NAME, LDS_BYTES)
```

```python
from common import *

NAME = "k3_kernel"
SB = 32768
NBUF = 4
LDS_BYTES = NBUF * SB
PART_OFF = 0x4000000

SRD_WS, SRD_C, SRD_W2, SRD_X, SRD_OUT, SRD_DS, SRD_DBG = 8, 12, 16, 20, 24, 28, 48
S_WAVE, S_MI, S_NJ, S_KH, S_MH, S_NH = 32, 33, 34, 35, 36, 52
S_CNT, S_STEP, S_SA, S_SBO = 37, 38, 39, 40
S_RB, S_WB, S_TILE = 41, 42, 43
S_T = 44
V_VA = 2
V_VB = 6
V_BX = 10
V_BC = 12
V_BW = 14
V_RX = 18
V_T = 24
V_XF = 40
V_WF = 104
V_EPI = 40


def gen():
    a = Asm()
    a("s_cmp_ge_u32 s2, 256")
    a("s_cbranch_scc1 K3_done")
    load_kernargs(a)
    a("v_lshrrev_b32 v1, 6, v0")
    a("s_nop 0")
    a("v_readfirstlane_b32 s%d, v1" % S_WAVE)
    a("s_and_b32 s3, s2, 7")
    a("s_lshr_b32 s4, s2, 3")
    a("s_and_b32 s%d, s4, 1" % S_KH)
    a("s_lshr_b32 s5, s4, 1")
    a("s_and_b32 s5, s5, 3")
    a("s_lshr_b32 s6, s3, 1")
    a("s_lshl_b32 s6, s6, 2")
    a("s_add_u32 s%d, s5, s6" % S_MI)
    a("s_lshr_b32 s5, s4, 3")
    a("s_and_b32 s6, s3, 1")
    a("s_lshl_b32 s6, s6, 2")
    a("s_add_u32 s%d, s5, s6" % S_NJ)
    a("s_lshl_b32 s%d, s%d, 3" % (S_TILE, S_MI))
    a("s_add_u32 s%d, s%d, s%d" % (S_TILE, S_TILE, S_NJ))
    a("s_lshr_b32 s%d, s%d, 1" % (S_MH, S_WAVE))
    a("s_and_b32 s%d, s%d, 1" % (S_NH, S_WAVE))
    a("v_and_b32 v1, 63, v0")
    a("s_waitcnt lgkmcnt(0)")
    make_srd(a, SRD_WS, KA['ws'], WS_BYTES)
    make_srd(a, SRD_W2, KA['w2'], F * D * 2)
    make_srd(a, SRD_X, KA['x'], L * D * 2)
    make_srd(a, SRD_OUT, KA['out'], L * D * 4)
    make_srd(a, SRD_DS, KA['dskip'], D * 2)
    make_srd(a, SRD_DBG, KA['dbg'], 256)
    make_srd(a, SRD_C, KA['cre'], D * P * 2)
    stamp(a, 0, SRD_WS, 2)
    a("v_lshrrev_b32 v%d, 4, v1" % V_T)
    a("v_and_b32 v%d, 7, v1" % (V_T + 1))
    a("v_xor_b32 v%d, v%d, v%d" % (V_T, V_T, V_T + 1))
    a("v_lshlrev_b32 v%d, 4, v%d" % (V_T, V_T))
    a("v_and_b32 v%d, 15, v1" % (V_T + 1))
    a("v_lshlrev_b32 v%d, 7, v%d" % (V_T + 1, V_T + 1))
    a("v_add_u32 v%d, v%d, v%d" % (V_T, V_T, V_T + 1))
    a("v_xor_b32 v%d, 64, v%d" % (V_T + 1, V_T))
    a("s_lshl_b32 s3, s%d, 13" % S_MH)
    a("s_lshl_b32 s4, s%d, 13" % S_NH)
    a("s_add_u32 s4, s4, 0x4000")
    for kk in range(2):
        a("v_add_u32 v%d, s3, v%d" % (V_BX + kk, V_T + kk))
        a("v_add_u32 v%d, s4, v%d" % (V_BC + kk, V_T + kk))
    a("v_lshrrev_b32 v%d, 4, v1" % V_T)
    a("v_lshlrev_b32 v%d, 2, v%d" % (V_T, V_T))
    a("v_and_b32 v%d, 15, v1" % (V_T + 1))
    a("v_lshrrev_b32 v%d, 2, v%d" % (V_T + 1, V_T + 1))
    a("v_add_u32 v%d, v%d, v%d" % (V_T, V_T, V_T + 1))
    a("v_and_b32 v%d, 7, v%d" % (V_T + 1, V_T))
    a("v_lshlrev_b32 v%d, 8, v%d" % (V_T, V_T))
    a("v_and_b32 v%d, 3, v1" % (V_T + 2))
    a("v_lshlrev_b32 v%d, 3, v%d" % (V_T + 2, V_T + 2))
    a("v_add_u32 v%d, v%d, v%d" % (V_T, V_T, V_T + 2))
    a("v_add_u32 v%d, 0x4000, v%d" % (V_T, V_T))
    a("s_lshl_b32 s3, s%d, 2" % S_NH)
    for nt in range(4):
        a("s_add_u32 s4, s3, %d" % nt)
        a("v_xor_b32 v%d, s4, v%d" % (V_T + 2, V_T + 1))
        a("v_lshlrev_b32 v%d, 5, v%d" % (V_T + 2, V_T + 2))
        a("v_add_u32 v%d, v%d, v%d" % (V_BW + nt, V_T, V_T + 2))

    def lane_rowpart(pitch):
        a("v_lshrrev_b32 v%d, 3, v1" % (V_T + 1))
        a("v_and_b32 v%d, 7, v1" % V_T)
        a("v_xor_b32 v%d, v%d, v%d" % (V_T, V_T, V_T + 1))
        a("v_lshlrev_b32 v%d, 4, v%d" % (V_T, V_T))
        a("s_mov_b32 s%d, %d" % (S_T, pitch))
        a("v_mul_lo_u32 v%d, s%d, v%d" % (V_T + 1, S_T, V_T + 1))
        a("v_add_u32 v%d, v%d, v%d" % (V_T, V_T, V_T + 1))

    def dma(seg, idx, tag):
        if idx % 4 == 0:
            a("s_lshl_b32 s%d, s%d, 12" % (S_T, S_WAVE))
            a("s_add_u32 s%d, s%d, s%d" % (S_T, S_T, S_WB))
            a("s_add_u32 m0, s%d, %d" % (S_T, (idx // 4) * 16384))
            a("s_nop 0")
        if idx < 4:
            a.vm("buffer_load_dwordx4 v%d, s[%d:%d], s%d offen offset:%d lds" %
                 (V_VA + idx, SRD_WS, SRD_WS + 3, S_SA, idx * 1024), tag)
        else:
            i = idx - 4
            srd = SRD_C if seg == 0 else SRD_W2
            a.vm("buffer_load_dwordx4 v%d, s[%d:%d], s%d offen offset:%d lds" %
                 (V_VB + i, srd, srd + 3, S_SBO, i * 1024), tag)

    def rot(s):
        a("s_add_u32 s%d, s%d, %d" % (s, s, SB))
        a("s_and_b32 s%d, s%d, %d" % (s, s, NBUF * SB - 1))

    def advance_dma(seg):
        a("s_add_u32 s%d, s%d, 1" % (S_STEP, S_STEP))
        a("s_lshl_b32 s%d, s%d, 7" % (S_SA, S_STEP))
        if seg == 0:
            a("s_and_b32 s%d, s%d, 15" % (S_SBO, S_STEP))
            a("s_lshl_b32 s%d, s%d, 7" % (S_SBO, S_SBO))
            a("s_cmp_lt_u32 s%d, 16" % S_STEP)
            a("s_cselect_b32 s%d, s%d, s%d" % (SRD_C, KA['cre'], KA['cim']))
            a("s_cselect_b32 s%d, s%d, s%d" % (SRD_C + 1, KA['cre'] + 1, KA['cim'] + 1))
            a("s_and_b32 s%d, s%d, 0xffff" % (SRD_C + 1, SRD_C + 1))
        else:
            a("s_lshl_b32 s%d, s%d, 17" % (S_SBO, S_STEP))
        rot(S_WB)

    def set_read_addrs(seg):
        for kk in range(2):
            a("v_add_u32 v%d, s%d, v%d" % (V_RX + kk, S_RB, V_BX + kk))
        if seg == 0:
            for kk in range(2):
                a("v_add_u32 v%d, s%d, v%d" % (V_RX + 2 + kk, S_RB, V_BC + kk))
        else:
            for nt in range(4):
                a("v_add_u32 v%d, s%d, v%d" % (V_RX + 2 + nt, S_RB, V_BW + nt))

    def frag_reads(seg, par):
        out = []
        tag = "F%d" % par
        for kk in range(2):
            for nt in range(4):
                d = V_WF + par * 32 + kk * 16 + nt * 4
                if seg == 0:
                    out.append(lambda d=d, kk=kk, nt=nt: a.lds("ds_read_b128 %s, v%d offset:%d" % (vr(d), V_RX + 2 + kk, nt * 2048), tag))
                else:
                    for h in range(2):
                        out.append(lambda d=d, kk=kk, nt=nt, h=h: a.lds("ds_read_b64_tr_b16 %s, v%d offset:%d" % (vr(d + 2 * h, 2), V_RX + 2 + nt, kk * 8192 + h * 4096), tag))
            for mt in range(4):
                d = V_XF + par * 32 + kk * 16 + mt * 4
                out.append(lambda d=d, kk=kk, mt=mt: a.lds("ds_read_b128 %s, v%d offset:%d" % (vr(d), V_RX + kk, mt * 2048), tag))
        return out

    uid = [0]

    def segment(seg):
        uid[0] += 1
        lab = "K3_seg%d_%d" % (seg, uid[0])
        accb = 0 if seg == 0 else 64
        pitch = 4096 if seg == 0 else 7168
        lane_rowpart(pitch)
        a("s_lshl_b32 s3, s%d, 2" % S_MI)
        a("s_add_u32 s3, s3, s%d" % S_WAVE)
        a("s_mul_i32 s3, s3, 0x%x" % (32 * pitch))
        a("s_add_u32 s3, s3, 0x%x" % (HS_OFF if seg == 0 else HMID_OFF))
        for i in range(4):
            a("s_add_u32 s4, s3, 0x%x" % (i * 8 * pitch - i * 1024))
            a("v_add_u32 v%d, s4, v%d" % (V_VA + i, V_T))
        if seg == 0:
            lane_rowpart(2048)
            a("s_lshl_b32 s3, s%d, 2" % S_NJ)
            a("s_add_u32 s3, s3, s%d" % S_WAVE)
            a("s_lshl_b32 s3, s3, 16")
            for i in range(4):
                a("s_add_u32 s4, s3, 0x%x" % (i * 8 * 2048 - i * 1024))
                a("v_add_u32 v%d, s4, v%d" % (V_VB + i, V_T))
        else:
            a("s_lshr_b32 s3, s%d, 1" % S_WAVE)
            a("s_lshl_b32 s3, s3, 5")
            a("s_and_b32 s4, s%d, 1" % S_WAVE)
            a("s_lshl_b32 s4, s4, 2")
            a("s_add_u32 s3, s3, s4")
            a("s_lshl_b32 s3, s3, 11")
            a("s_lshl_b32 s4, s%d, 8" % S_NJ)
            a("s_add_u32 s3, s3, s4")
            for i in range(4):
                a("v_lshrrev_b32 v%d, 4, v1" % V_T)
                a("v_add_u32 v%d, %d, v%d" % (V_T + 1, (4 * i) & 7, V_T))
                a("v_lshrrev_b32 v%d, 1, v1" % (V_T + 2))
                a("v_and_b32 v%d, 7, v%d" % (V_T + 2, V_T + 2))
                a("v_xor_b32 v%d, v%d, v%d" % (V_T + 1, V_T + 1, V_T + 2))
                a("v_lshlrev_b32 v%d, 5, v%d" % (V_T + 1, V_T + 1))
                a("v_and_b32 v%d, 1, v1" % (V_T + 2))
                a("v_lshlrev_b32 v%d, 4, v%d" % (V_T + 2, V_T + 2))
                a("v_lshlrev_b32 v%d, 11, v%d" % (V_T, V_T))
                a("v_add3_u32 v%d, v%d, v%d, v%d" % (V_T, V_T, V_T + 1, V_T + 2))
                a("s_add_u32 s4, s3, %d" % (i * 8 * 2048 - i * 1024))
                a("v_add_u32 v%d, s4, v%d" % (V_VB + i, V_T))
        a("s_sub_u32 s%d, s%d, 1" % (S_STEP, S_STEP))
        a("s_mov_b32 s%d, 0" % S_RB)
        a("s_mov_b32 s%d, 0" % S_WB)
        advance_dma(seg)
        a("s_mov_b32 s%d, 0" % S_WB)
        for st in range(4):
            for i in range(8):
                dma(seg, i, "D")
            advance_dma(seg)
        a("s_waitcnt vmcnt(24)")
        a("s_barrier")
        set_read_addrs(seg)
        for f in frag_reads(seg, 0):
            f()
        rot(S_RB)
        a.label(lab + "_loop")
        for par in range(2):
            a("s_waitcnt vmcnt(16) lgkmcnt(0)")
            a.lq = []
            a("s_barrier")
            set_read_addrs(seg)
            reads = frag_reads(seg, 1 - par)
            n = 0
            for kk in range(2):
                for nt in range(4):
                    for mt in range(4):
                        if n < len(reads):
                            reads[n]()
                        if 4 <= n < 20 and n % 2 == 0:
                            dma(seg, (n - 4) // 2, "D")
                        ab = accb + (nt * 4 + mt) * 4
                        a("v_mfma_f32_16x16x32_bf16 %s, %s, %s, %s" % (ar(ab), vr(V_WF + par * 32 + kk * 16 + nt * 4), vr(V_XF + par * 32 + kk * 16 + mt * 4), ar(ab)))
                        n += 1
            advance_dma(seg)
            rot(S_RB)
        a("s_sub_u32 s%d, s%d, 2" % (S_CNT, S_CNT))
        a("s_cmp_gt_u32 s%d, 0" % S_CNT)
        a("s_cbranch_scc1 %s_loop" % lab)
        a.wait_vm_all()
        a.wait_lds_all()
        a("s_barrier")

    for i in range(128):
        a("v_accvgpr_write_b32 a%d, 0" % i)
    VP = V_T + 8
    a("s_lshl_b32 s3, s%d, 16" % S_TILE)
    a("s_lshl_b32 s4, s%d, 14" % S_WAVE)
    a("s_add_u32 s3, s3, s4")
    a("s_add_u32 s3, s3, 0x%x" % PART_OFF)
    a("v_lshlrev_b32 v%d, 4, v1" % VP)
    a("v_add_u32 v%d, s3, v%d" % (VP, VP))
    a("s_cmp_eq_u32 s%d, 0" % S_KH)
    a("s_cbranch_scc1 K3_role0")
    a("s_mov_b32 s%d, 44" % S_CNT)
    a("s_mov_b32 s%d, 12" % S_STEP)
    segment(1)
    stamp(a, 1, SRD_WS, 2)
    a("s_nop 7")
    for t4 in range(4):
        for q in range(4):
            ti = t4 * 4 + q
            for r in range(4):
                a("v_accvgpr_read_b32 v%d, a%d" % (V_EPI + ti * 4 + r, 64 + ti * 4 + r))
        for q in range(4):
            ti = t4 * 4 + q
            a("buffer_store_dwordx4 %s, v%d, s[%d:%d], 0 offen offset:%d sc1" % (vr(V_EPI + ti * 4), VP, SRD_WS, SRD_WS + 3, q * 1024))
        a("v_add_u32 v%d, 0x1000, v%d" % (VP, VP))
    a("s_waitcnt vmcnt(0)")
    a("s_barrier")
    a("s_cmp_lg_u32 s%d, 0" % S_WAVE)
    a("s_cbranch_scc1 K3_done")
    a("s_and_b32 s3, s%d, 31" % S_TILE)
    a("s_lshl_b32 s3, 1, s3")
    a("v_mov_b32 v%d, s3" % V_T)
    a("s_lshr_b32 s3, s%d, 5" % S_TILE)
    a("s_lshl_b32 s3, s3, 2")
    a("v_mov_b32 v%d, s3" % (V_T + 1))
    a("v_cmp_eq_u32 vcc, 0, v0")
    a("s_and_saveexec_b64 s[4:5], vcc")
    a("buffer_atomic_or v%d, v%d, s[%d:%d], 0 offen sc1" % (V_T, V_T + 1, SRD_DBG, SRD_DBG + 3))
    a("s_endpgm")
    a.label("K3_role0")
    a("s_mov_b32 s%d, 32" % S_CNT)
    a("s_mov_b32 s%d, 0" % S_STEP)
    segment(0)
    stamp(a, 1, SRD_WS, 2)
    a("s_mov_b32 s%d, 12" % S_CNT)
    a("s_mov_b32 s%d, 0" % S_STEP)
    segment(1)
    stamp(a, 2, SRD_WS, 2)
    VM, VN = V_T + 2, V_T + 3
    a("s_lshl_b32 s3, s%d, 7" % S_MI)
    a("s_lshl_b32 s4, s%d, 6" % S_MH)
    a("s_add_u32 s3, s3, s4")
    a("v_and_b32 v%d, 15, v1" % VM)
    a("v_add_u32 v%d, s3, v%d" % (VM, VM))
    a("s_lshl_b32 s3, s%d, 7" % S_NJ)
    a("s_lshl_b32 s4, s%d, 6" % S_NH)
    a("s_add_u32 s3, s3, s4")
    a("v_lshrrev_b32 v%d, 4, v1" % VN)
    a("v_lshlrev_b32 v%d, 2, v%d" % (VN, VN))
    a("v_add_u32 v%d, s3, v%d" % (VN, VN))
    GG = V_EPI
    DS = V_EPI + 4
    XX = V_EPI + 12
    PB = V_EPI + 44
    TMP = V_EPI + 196
    a("v_lshlrev_b32 v%d, 2, v%d" % (V_T + 4, VM))
    a("v_add_u32 v%d, 0x%x, v%d" % (V_T + 4, G_OFF, V_T + 4))
    for mt in range(4):
        a("buffer_load_dword v%d, v%d, s[%d:%d], 0 offen offset:%d" % (GG + mt, V_T + 4, SRD_WS, SRD_WS + 3, mt * 64))
    a("v_lshlrev_b32 v%d, 1, v%d" % (V_T + 4, VN))
    for nt in range(4):
        a("buffer_load_dwordx2 %s, v%d, s[%d:%d], 0 offen offset:%d" % (vr(DS + 2 * nt, 2), V_T + 4, SRD_DS, SRD_DS + 3, nt * 32))
    a("v_lshlrev_b32 v%d, 11, v%d" % (V_T + 5, VM))
    a("v_add_u32 v%d, v%d, v%d" % (V_T + 4, V_T + 4, V_T + 5))
    for mt in range(4):
        for nt in range(4):
            a("buffer_load_dwordx2 %s, v%d, s[%d:%d], 0 offen offset:%d" % (vr(XX + (mt * 4 + nt) * 2, 2), V_T + 4, SRD_X, SRD_X + 3, nt * 32))
        a("v_add_u32 v%d, 0x8000, v%d" % (V_T + 4, V_T + 4))
    a("v_lshlrev_b32 v%d, 12, v%d" % (V_T + 6, VM))
    a("v_lshlrev_b32 v%d, 2, v%d" % (V_T + 7, VN))
    a("v_add_u32 v%d, v%d, v%d" % (V_T + 6, V_T + 6, V_T + 7))
    OO = V_EPI + 116
    OB = V_EPI + 180
    a("s_waitcnt vmcnt(0)")
    for mt in range(4):
        g = GG + mt
        a("v_sub_f32 v%d, 1.0, v%d" % (OB + mt, g))
        a("v_cvt_pk_bf16_f32 v%d, v%d, v%d" % (OB + mt, OB + mt, OB + mt))
        a("v_lshlrev_b32 v%d, 16, v%d" % (OB + mt, OB + mt))
        for nt in range(4):
            ti = nt * 4 + mt
            xa = XX + (mt * 4 + nt) * 2
            da = DS + nt * 2
            o = OO + ti * 4
            for r in range(4):
                a("v_accvgpr_read_b32 v%d, a%d" % (o + r, ti * 4 + r))
            for p in range(2):
                t0, t1, t2, t3 = TMP + 4 * p, TMP + 4 * p + 1, TMP + 4 * p + 2, TMP + 4 * p + 3
                a("v_lshlrev_b32 v%d, 16, v%d" % (t0, xa + p))
                a("v_and_b32 v%d, 0xffff0000, v%d" % (t1, xa + p))
                a("v_lshlrev_b32 v%d, 16, v%d" % (t2, da + p))
                a("v_and_b32 v%d, 0xffff0000, v%d" % (t3, da + p))
                a("v_mul_f32 v%d, v%d, v%d" % (t0, t0, t2))
                a("v_mul_f32 v%d, v%d, v%d" % (t1, t1, t3))
                a("v_cvt_pk_bf16_f32 v%d, v%d, v%d" % (t2, t0, t1))
                a("v_lshlrev_b32 v%d, 16, v%d" % (t0, t2))
                a("v_and_b32 v%d, 0xffff0000, v%d" % (t1, t2))
                a("v_fma_f32 v%d, 2.0, v%d, v%d" % (o + 2 * p, o + 2 * p, t0))
                a("v_fma_f32 v%d, 2.0, v%d, v%d" % (o + 2 * p + 1, o + 2 * p + 1, t1))
                a("v_mul_f32 v%d, v%d, v%d" % (o + 2 * p, g, o + 2 * p))
                a("v_mul_f32 v%d, v%d, v%d" % (o + 2 * p + 1, g, o + 2 * p + 1))
    a("s_and_b32 s3, s%d, 31" % S_TILE)
    a("s_lshl_b32 s3, 1, s3")
    a("s_lshr_b32 s4, s%d, 5" % S_TILE)
    a("s_lshl_b32 s4, s4, 2")
    a("v_mov_b32 v%d, s4" % (V_T + 4))
    a("s_mov_b32 s5, 0")
    a.label("K3_poll")
    a("buffer_load_dword v%d, v%d, s[%d:%d], 0 offen sc1" % (V_T + 5, V_T + 4, SRD_DBG, SRD_DBG + 3))
    a("s_waitcnt vmcnt(0)")
    a("v_readfirstlane_b32 s6, v%d" % (V_T + 5))
    a("s_and_b32 s6, s6, s3")
    a("s_cmp_eq_u32 s6, s3")
    a("s_cbranch_scc1 K3_poll_done")
    a("s_sleep 2")
    a("s_add_u32 s5, s5, 1")
    a("s_cmp_lt_u32 s5, 0x80000")
    a("s_cbranch_scc1 K3_poll")
    a.label("K3_poll_done")
    stamp(a, 3, SRD_WS, 2)
    order = [(mt, nt) for mt in range(4) for nt in range(4)]
    for (mt, nt) in order:
        ti = nt * 4 + mt
        a("v_add_u32 v%d, 0x%x, v%d" % (V_T + 4, (ti // 4) * 0x1000, VP))
        a("buffer_load_dwordx4 %s, v%d, s[%d:%d], 0 offen offset:%d sc1" % (vr(PB + ti * 4), V_T + 4, SRD_WS, SRD_WS + 3, (ti % 4) * 1024))
    for k, (mt, nt) in enumerate(order):
        ti = nt * 4 + mt
        o = OO + ti * 4
        b = PB + ti * 4
        for r in range(4):
            a("v_accvgpr_read_b32 v%d, a%d" % (TMP + r, 64 + ti * 4 + r))
        a("s_waitcnt vmcnt(15)")
        for r in range(4):
            a("v_add_f32 v%d, v%d, v%d" % (b + r, b + r, TMP + r))
        for p in range(2):
            t0, t1, t2 = TMP + 4 + 3 * p, TMP + 5 + 3 * p, TMP + 6 + 3 * p
            a("v_cvt_pk_bf16_f32 v%d, v%d, v%d" % (t2, b + 2 * p, b + 2 * p + 1))
            a("v_lshlrev_b32 v%d, 16, v%d" % (t0, t2))
            a("v_and_b32 v%d, 0xffff0000, v%d" % (t1, t2))
            a("v_mul_f32 v%d, v%d, v%d" % (t0, OB + mt, t0))
            a("v_mul_f32 v%d, v%d, v%d" % (t1, OB + mt, t1))
            a("v_cvt_pk_bf16_f32 v%d, v%d, v%d" % (t2, t0, t1))
            a("v_lshlrev_b32 v%d, 16, v%d" % (t0, t2))
            a("v_and_b32 v%d, 0xffff0000, v%d" % (t1, t2))
            a("v_add_f32 v%d, v%d, v%d" % (o + 2 * p, o + 2 * p, t0))
            a("v_add_f32 v%d, v%d, v%d" % (o + 2 * p + 1, o + 2 * p + 1, t1))
        a("buffer_store_dwordx4 %s, v%d, s[%d:%d], 0 offen offset:%d" % (vr(o), V_T + 6, SRD_OUT, SRD_OUT + 3, nt * 64))
        if nt == 3:
            a("v_add_u32 v%d, 0x10000, v%d" % (V_T + 6, V_T + 6))
    if STAMP:
        a("s_waitcnt vmcnt(0)")
    stamp(a, 4, SRD_WS, 2)
    a.label("K3_done")
    a("s_endpgm")
    return a.text()


DESC = kernel_desc(NAME, 384, 256)
LAUNCH = "; @launch kernel=%s grid=(256,1,1) block=(256,1,1) lds=%d" % (NAME, LDS_BYTES)
```

```python
from common import *

NAME = "k1_kernel"
BUF = 69632
XOFF, BMOFF, WOFF = 0, 32768, 40960
WMAT = 14336
PTAB = 2 * BUF
LDS_BYTES = 2 * BUF + 512

SRD_X, SRD_BM, SRD_W, SRD_WS, SRD_P = 8, 12, 16, 24, 28
S_SX, S_SW, S_CNT, S_WAVE, S_MI, S_NJ = 40, 41, 42, 43, 44, 45
S_MASK = 46
S_M0X, S_M0B, S_M0W = 48, 49, 50
S_GROW, S_RB, S_CH = 51, 52, 53
SRD_G = 56
V_VX = 2
V_VB = 6
V_VW = 7
V_VA = 11
V_VBM = 15
V_VWB = 19
V_T = 24
V_A = 40
V_RING = 72
NSLOT = 4
PD = 3
V_EPI = 40
ACCV = 96

TILES = [
    [('B', 0), ('B', 1), ('B', 2), ('B', 3), ('W', 0, 0), ('W', 0, 1), ('W', 1, 0), ('W', 1, 1)],
    [('W', 0, t) for t in range(2, 7)] + [('W', 1, t) for t in range(2, 7)],
]


def acc(j, mt):
    idx = j * 4 + mt
    if idx < 32:
        return ("a", idx * 4)
    return ("v", ACCV + (idx - 32) * 4)


def accs(j, mt):
    k, b = acc(j, mt)
    return "%s[%d:%d]" % (k, b, b + 3)


def gen():
    a = Asm()
    a("s_cmp_ge_u32 s2, 256")
    a("s_cbranch_scc1 K1_done")
    load_kernargs(a)
    a("v_lshrrev_b32 v1, 6, v0")
    a("s_nop 0")
    a("v_readfirstlane_b32 s%d, v1" % S_WAVE)
    a("s_and_b32 s%d, s2, 7" % S_NJ)
    a("s_lshl_b32 s%d, s%d, 2" % (S_NJ, S_NJ))
    a("s_lshr_b32 s3, s2, 3")
    a("s_and_b32 s3, s3, 3")
    a("s_add_u32 s%d, s%d, s3" % (S_NJ, S_NJ))
    a("s_lshr_b32 s%d, s2, 5" % S_MI)
    a("s_and_b32 s%d, s%d, 3" % (S_RB, S_WAVE))
    a("s_lshr_b32 s%d, s%d, 2" % (S_CH, S_WAVE))
    a("v_and_b32 v1, 63, v0")
    a("s_waitcnt lgkmcnt(0)")
    make_srd(a, SRD_X, KA['x'], L * D * 2)
    make_srd(a, SRD_WS, KA['ws'], WS_BYTES)
    stamp(a, 0, SRD_WS, 0)
    a("s_cmp_eq_u32 s%d, 0" % S_CH)
    for (srd, k0, k1, nb) in ((SRD_BM, 'bre', 'bim', P * D * 2), (SRD_W, 'w1', 'w3', D * F * 2)):
        a("s_cselect_b32 s%d, s%d, s%d" % (srd, KA[k0], KA[k1]))
        a("s_cselect_b32 s%d, s%d, s%d" % (srd + 1, KA[k0] + 1, KA[k1] + 1))
        a("s_mov_b32 s%d, 0x%x" % (srd + 2, nb))
        a("s_mov_b32 s%d, 0x00020000" % (srd + 3))
    a("s_and_b32 s%d, s%d, 0xffff" % (SRD_BM + 1, SRD_BM + 1))
    a("s_and_b32 s%d, s%d, 0xffff" % (SRD_W + 1, SRD_W + 1))
    a("v_lshrrev_b32 v%d, 3, v1" % (V_T + 1))
    a("v_and_b32 v%d, 7, v1" % V_T)
    a("v_xor_b32 v%d, v%d, v%d" % (V_T, V_T, V_T + 1))
    a("v_lshlrev_b32 v%d, 4, v%d" % (V_T, V_T))
    a("v_lshlrev_b32 v%d, 11, v%d" % (V_T + 1, V_T + 1))
    a("v_add_u32 v%d, v%d, v%d" % (V_T, V_T, V_T + 1))
    a("s_lshl_b32 s3, s%d, 8" % S_MI)
    a("s_lshl_b32 s4, s%d, 5" % S_WAVE)
    a("s_add_u32 s3, s3, s4")
    a("s_lshl_b32 s3, s3, 11")
    for i in range(4):
        a("s_add_u32 s4, s3, 0x%x" % (i * 8 * 2048 - i * 1024))
        a("v_add_u32 v%d, s4, v%d" % (V_VX + i, V_T))
    a("s_lshl_b32 s3, s%d, 5" % S_NJ)
    a("s_lshl_b32 s4, s%d, 3" % S_RB)
    a("s_add_u32 s3, s3, s4")
    a("s_lshl_b32 s3, s3, 11")
    a("v_add_u32 v%d, s3, v%d" % (V_VB, V_T))
    a("v_mul_u32_u24 v%d, 37, v1" % V_T)
    a("v_lshrrev_b32 v%d, 9, v%d" % (V_T, V_T))
    a("v_mul_u32_u24 v%d, 14, v%d" % (V_T + 1, V_T))
    a("v_sub_u32 v%d, v1, v%d" % (V_T + 1, V_T + 1))
    a("v_lshlrev_b32 v%d, 4, v%d" % (V_T + 1, V_T + 1))
    a("s_movk_i32 s4, 0x1c00")
    a("v_mul_lo_u32 v%d, s4, v%d" % (V_T, V_T))
    a("v_add_u32 v%d, v%d, v%d" % (V_T, V_T, V_T + 1))
    a("s_mul_i32 s3, s%d, 224" % S_NJ)
    a("s_lshr_b32 s5, s%d, 1" % S_RB)
    a("s_lshl_b32 s5, s5, 5")
    a("s_and_b32 s6, s%d, 1" % S_RB)
    a("s_lshl_b32 s6, s6, 2")
    a("s_add_u32 s5, s5, s6")
    a("s_mul_i32 s5, s5, 7168")
    a("s_add_u32 s5, s5, s3")
    for t in range(4):
        a("s_add_u32 s6, s5, %d" % (t * 8 * 7168 - t * 896))
        a("v_add_u32 v%d, s6, v%d" % (V_VW + t, V_T))
    a("s_mov_b32 s%d, -1" % S_MASK)
    a("s_mov_b32 s%d, 0x00ffffff" % (S_MASK + 1))
    a("s_lshl_b32 s%d, s%d, 12" % (S_M0X, S_WAVE))
    a("s_lshl_b32 s%d, s%d, 10" % (S_M0B, S_WAVE))
    a("s_add_u32 s%d, s%d, %d" % (S_M0B, S_M0B, BMOFF))
    a("s_mul_i32 s%d, s%d, 3584" % (S_M0W, S_RB))
    a("s_mul_i32 s3, s%d, %d" % (S_CH, WMAT))
    a("s_add_u32 s%d, s%d, s3" % (S_M0W, S_M0W))
    a("s_add_u32 s%d, s%d, %d" % (S_M0W, S_M0W, WOFF))
    a("s_mov_b32 s%d, 0" % S_SX)
    a("s_mov_b32 s%d, 0" % S_SW)

    def dma(idx, b):
        tag = "dma%d" % b
        if idx < 4:
            if idx == 0:
                a("s_add_u32 m0, s%d, %d" % (S_M0X, b * BUF))
                a("s_nop 0")
            a.vm("buffer_load_dwordx4 v%d, s[%d:%d], s%d offen offset:%d lds" % (V_VX + idx, SRD_X, SRD_X + 3, S_SX, idx * 1024), tag)
        elif idx == 4:
            a("s_add_u32 m0, s%d, %d" % (S_M0B, b * BUF))
            a("s_nop 0")
            a.vm("buffer_load_dwordx4 v%d, s[%d:%d], s%d offen lds" % (V_VB, SRD_BM, SRD_BM + 3, S_SX), tag)
        else:
            t = idx - 5
            if t == 0:
                a("s_add_u32 m0, s%d, %d" % (S_M0W, b * BUF))
            a("s_mov_b64 exec, s[%d:%d]" % (S_MASK, S_MASK + 1))
            a.vm("buffer_load_dwordx4 v%d, s[%d:%d], s%d offen offset:%d lds" % (V_VW + t, SRD_W, SRD_W + 3, S_SW, t * 896), tag)
            a("s_mov_b64 exec, -1")
        if idx == 8:
            a("s_add_u32 s%d, s%d, 128" % (S_SX, S_SX))
            a("s_add_u32 s%d, s%d, 0x%x" % (S_SW, S_SW, 64 * 7168))

    for i in range(9):
        dma(i, 0)
    RAW = V_EPI + 40
    a("s_lshl_b32 s3, s%d, 5" % S_NJ)
    a("v_and_b32 v%d, 31, v1" % V_T)
    a("v_add_u32 v%d, s3, v%d" % (V_T, V_T))
    a("v_lshlrev_b32 v%d, 1, v%d" % (V_T, V_T))
    for i, nm in enumerate(['lre', 'lim', 'ldt']):
        sp = SRD_P + 4 * i
        make_srd(a, sp, KA[nm], P * 2)
        a.vm("buffer_load_ushort v%d, v%d, s[%d:%d], 0 offen" % (RAW + i, V_T, sp, sp + 3), "raw")
    GX = V_EPI
    GW = V_EPI + 8
    make_srd(a, SRD_G, KA['gw'], D * 2)
    a("v_lshlrev_b32 v%d, 4, v1" % V_T)
    a.vm("buffer_load_dwordx4 %s, v%d, s[%d:%d], 0 offen" % (vr(GW), V_T, SRD_G, SRD_G + 3), "g")
    a.vm("buffer_load_dwordx4 %s, v%d, s[%d:%d], 0 offen offset:1024" % (vr(GW + 4), V_T, SRD_G, SRD_G + 3), "g")
    a("s_lshl_b32 s3, s%d, 8" % S_MI)
    a("s_lshl_b32 s4, s%d, 3" % S_NJ)
    a("s_add_u32 s3, s3, s4")
    a("s_add_u32 s%d, s3, s%d" % (S_GROW, S_WAVE))
    a("s_lshl_b32 s3, s%d, 11" % S_GROW)
    a("v_add_u32 v%d, s3, v%d" % (V_T + 1, V_T))
    for q in range(2):
        a.vm("buffer_load_dwordx4 %s, v%d, s[%d:%d], 0 offen offset:%d" % (vr(GX + 4 * q), V_T + 1, SRD_X, SRD_X + 3, q * 1024), "g")
    for i in range(8):
        dma(i, 1)
    make_srd(a, SRD_P, KA['w2'], F * D * 2)
    make_srd(a, SRD_P + 4, KA['cre'], D * P * 2)
    make_srd(a, SRD_P + 8, KA['cim'], D * P * 2)
    a("s_lshl_b32 s3, s2, 3")
    a("s_add_u32 s3, s3, s%d" % S_WAVE)
    a("s_mul_i32 s4, s3, 28")
    a("v_add_u32 v%d, s4, v1" % V_T)
    a("v_lshlrev_b32 v%d, 7, v%d" % (V_T, V_T))
    a("v_cmp_gt_u32 vcc, 28, v1")
    a("v_mov_b32 v%d, -1" % (V_T + 1))
    a("s_nop 0")
    a("v_cndmask_b32 v%d, v%d, v%d, vcc" % (V_T, V_T + 1, V_T))
    a.vm("buffer_load_dword v%d, v%d, s[%d:%d], 0 offen" % (V_T + 8, V_T, SRD_P, SRD_P + 3), "pf")
    a("s_lshl_b32 s4, s3, 3")
    a("v_and_b32 v%d, 7, v1" % V_T)
    a("v_add_u32 v%d, s4, v%d" % (V_T, V_T))
    a("v_lshlrev_b32 v%d, 7, v%d" % (V_T, V_T))
    a.vm("buffer_load_dword v%d, v%d, s[%d:%d], 0 offen" % (V_T + 9, V_T, SRD_P + 4, SRD_P + 7), "pf")
    a.vm("buffer_load_dword v%d, v%d, s[%d:%d], 0 offen" % (V_T + 10, V_T, SRD_P + 8, SRD_P + 11), "pf")
    a("v_lshrrev_b32 v%d, 4, v1" % V_T)
    a("v_and_b32 v%d, 7, v1" % (V_T + 1))
    a("v_xor_b32 v%d, v%d, v%d" % (V_T, V_T, V_T + 1))
    a("v_lshlrev_b32 v%d, 4, v%d" % (V_T, V_T))
    a("v_and_b32 v%d, 15, v1" % (V_T + 1))
    a("v_lshlrev_b32 v%d, 7, v%d" % (V_T + 1, V_T + 1))
    a("v_add_u32 v%d, v%d, v%d" % (V_T, V_T, V_T + 1))
    a("v_xor_b32 v%d, 64, v%d" % (V_T + 1, V_T))
    a("s_lshl_b32 s3, s%d, 13" % S_RB)
    for b in range(2):
        for kk in range(2):
            a("s_add_u32 s4, s3, %d" % (b * BUF + XOFF))
            a("v_add_u32 v%d, s4, v%d" % (V_VA + 2 * b + kk, V_T + kk))
            a("v_add_u32 v%d, 0x%x, v%d" % (V_VBM + 2 * b + kk, b * BUF + BMOFF, V_T + kk))
    a("v_lshrrev_b32 v%d, 4, v1" % V_T)
    a("v_lshlrev_b32 v%d, 2, v%d" % (V_T, V_T))
    a("v_and_b32 v%d, 15, v1" % (V_T + 1))
    a("v_lshrrev_b32 v%d, 2, v%d" % (V_T + 1, V_T + 1))
    a("v_add_u32 v%d, v%d, v%d" % (V_T, V_T, V_T + 1))
    a("v_mul_u32_u24 v%d, 0xe0, v%d" % (V_T, V_T))
    a("v_and_b32 v%d, 3, v1" % (V_T + 1))
    a("v_lshlrev_b32 v%d, 3, v%d" % (V_T + 1, V_T + 1))
    a("v_add_u32 v%d, v%d, v%d" % (V_T, V_T, V_T + 1))
    for b in range(2):
        a("v_add_u32 v%d, 0x%x, v%d" % (V_VWB + b, b * BUF + WOFF, V_T))
    for i in range(128):
        a("v_accvgpr_write_b32 a%d, 0" % i)
    for i in range(32):
        a("v_mov_b32 v%d, 0" % (ACCV + i))
    a.wait_vm("raw")
    PR = V_EPI + 44
    ssm_params(a, RAW, PR, V_T)
    a("v_lshlrev_b32 v%d, 4, v0" % V_T)
    a("v_add_u32 v%d, 0x%x, v%d" % (V_T, PTAB, V_T))
    a("v_cmp_gt_u32 vcc, 32, v0")
    a("s_and_saveexec_b64 s[4:5], vcc")
    a("ds_write_b128 v%d, %s" % (V_T, vr(PR)))
    a("s_mov_b64 exec, s[4:5]")
    a.wait_vm("g")
    GS = V_EPI + 16
    a("v_mov_b32 v%d, 0" % GS)
    for q in range(8):
        xs, gs = GX + q, GW + q
        a("v_lshlrev_b32 v%d, 16, v%d" % (V_T, xs))
        a("v_lshlrev_b32 v%d, 16, v%d" % (V_T + 1, gs))
        a("v_and_b32 v%d, 0xffff0000, v%d" % (V_T + 2, xs))
        a("v_and_b32 v%d, 0xffff0000, v%d" % (V_T + 3, gs))
        a("v_mul_f32 v%d, v%d, v%d" % (V_T, V_T, V_T + 1))
        a("v_mul_f32 v%d, v%d, v%d" % (V_T + 2, V_T + 2, V_T + 3))
        a("v_cvt_pk_bf16_f32 v%d, v%d, v%d" % (V_T, V_T, V_T + 2))
        a("v_lshlrev_b32 v%d, 16, v%d" % (V_T + 1, V_T))
        a("v_and_b32 v%d, 0xffff0000, v%d" % (V_T + 2, V_T))
        a("v_add_f32 v%d, v%d, v%d" % (GS, GS, V_T + 1))
        a("v_add_f32 v%d, v%d, v%d" % (GS, GS, V_T + 2))
    for k in range(6):
        a("v_xor_b32 v%d, %d, v1" % (V_T, 1 << k))
        a("v_lshlrev_b32 v%d, 2, v%d" % (V_T, V_T))
        a("ds_bpermute_b32 v%d, v%d, v%d" % (V_T + 1, V_T, GS))
        a("s_waitcnt lgkmcnt(0)")
        a("v_add_f32 v%d, v%d, v%d" % (GS, GS, V_T + 1))
    g = GS
    a("v_cvt_pk_bf16_f32 v%d, v%d, v%d" % (g, g, g))
    a("v_lshlrev_b32 v%d, 16, v%d" % (g, g))
    a("v_mul_f32 v%d, 0x%x, v%d" % (g, LOG2E | 0x80000000, g))
    a("v_exp_f32 v%d, v%d" % (g, g))
    a("s_nop 0")
    a("v_add_f32 v%d, 1.0, v%d" % (g, g))
    a("v_rcp_f32 v%d, v%d" % (g, g))
    a("s_nop 0")
    a("v_cvt_pk_bf16_f32 v%d, v%d, v%d" % (g, g, g))
    a("v_lshlrev_b32 v%d, 16, v%d" % (g, g))
    a("s_lshl_b32 s3, s%d, 2" % S_GROW)
    a("s_add_u32 s3, s3, 0x%x" % G_OFF)
    a("v_mov_b32 v%d, s3" % V_T)
    a("v_cmp_eq_u32 vcc, 0, v1")
    a("s_and_saveexec_b64 s[4:5], vcc")
    a.vm("buffer_store_dword v%d, v%d, s[%d:%d], 0 offen" % (GS, V_T, SRD_WS, SRD_WS + 3), "gst")
    a("s_mov_b64 exec, s[4:5]")
    a("s_barrier")
    stamp(a, 1, SRD_WS, 0)
    a("s_mov_b32 s%d, 0" % S_CNT)
    vq_entry = list(a.vq)

    def mainloop(chh):
        tl = TILES[chh]
        nt = len(tl)
        a.lq = []
        a.vq = list(vq_entry)

        def read_frag(b, ts, ctr):
            kk, tile = ts // nt, tl[ts % nt]
            slot = V_RING + (ctr % NSLOT) * 4
            tag = "f%d" % (ctr % NSLOT)
            if tile[0] == 'B':
                a.lds("ds_read_b128 %s, v%d offset:%d" % (vr(slot), V_VBM + 2 * b + kk, tile[1] * 2048), tag)
            else:
                for h in range(2):
                    a.lds("ds_read_b64_tr_b16 %s, v%d offset:%d" % (vr(slot + 2 * h, 2), V_VWB + b, tile[1] * WMAT + kk * 7168 + h * 3584 + tile[2] * 32), tag)

        def read_a(b, kk, mt):
            a.lds("ds_read_b128 %s, v%d offset:%d" % (vr(V_A + kk * 16 + mt * 4), V_VA + 2 * b + kk, mt * 2048), "A%d" % kk)

        read_a(0, 0, 0)
        a.wait_lds_all()
        for jj in range(PD):
            read_a(0, 0, jj + 1)
            read_frag(0, jj, jj)
        lq0 = list(a.lq)
        a.label("K1_loop%d" % chh)
        for b in range(2):
            nb = 1 - b
            for ts in range(2 * nt):
                kk, j = ts // nt, ts % nt
                ctr = b * 2 * nt + ts
                if ts == 0:
                    dma(8, nb)
                if ts == 2 * nt - 4:
                    a.wait_lds_all()
                    a.wait_vm("dma%d" % nb)
                    a("s_barrier")
                if ts >= 2 * nt - 4:
                    q = ts - (2 * nt - 4)
                    dma(2 * q, b)
                    dma(2 * q + 1, b)
                    read_a(nb, 0, q)
                nts = ts + PD
                if nts < 2 * nt:
                    read_frag(b, nts, ctr + PD)
                else:
                    read_frag(nb, nts - 2 * nt, ctr + PD)
                if nt - 4 <= ts < nt:
                    read_a(b, 1, ts - (nt - 4))
                tags = ["f%d" % (ctr % NSLOT)]
                if j == 0:
                    tags.append("A%d" % kk)
                a.wait_lds(tags)
                slot = vr(V_RING + (ctr % NSLOT) * 4)
                for mt in range(4):
                    xa = vr(V_A + kk * 16 + mt * 4)
                    if tl[j][0] == 'B':
                        a("v_mfma_f32_16x16x32_bf16 %s, %s, %s, %s" % (accs(j, mt), xa, slot, accs(j, mt)))
                    else:
                        a("v_mfma_f32_16x16x32_bf16 %s, %s, %s, %s" % (accs(j, mt), slot, xa, accs(j, mt)))
        assert a.lq == lq0, (a.lq, lq0)
        a("s_add_u32 s%d, s%d, 1" % (S_CNT, S_CNT))
        a("s_cmp_lt_u32 s%d, 8" % S_CNT)
        a("s_cbranch_scc1 K1_loop%d" % chh)

    a("s_cmp_eq_u32 s%d, 0" % S_CH)
    a("s_cbranch_scc0 K1_main1")
    mainloop(0)
    a("s_branch K1_main_end")
    a.label("K1_main1")
    mainloop(1)
    a.label("K1_main_end")
    a.wait_vm_all()
    a.wait_lds_all()
    a("s_barrier")
    a("s_nop 7")
    stamp(a, 2, SRD_WS, 0)

    SCS = 2064
    ESEG = 0
    SCB = 4096
    FFL = 73728
    HSL = 4096
    LR, LI, P16, CA, PWS, P32 = V_T + 8, V_T + 9, V_T + 10, V_T + 12, V_T + 14, V_EPI + 22
    VSEG = V_T + 7
    TT = V_T + 4
    TT2 = V_EPI + 20
    SBA = V_T + 6
    H = 64
    a("v_and_b32 v%d, 15, v1" % V_T)
    a("v_mul_u32_u24 v%d, 0xe0, v%d" % (V_T, V_T))
    a("v_lshrrev_b32 v%d, 4, v1" % (V_T + 1))
    a("v_lshlrev_b32 v%d, 3, v%d" % (V_T + 1, V_T + 1))
    a("v_add_u32 v%d, v%d, v%d" % (V_T, V_T, V_T + 1))
    a("s_mul_i32 s3, s%d, 14336" % S_RB)
    a("s_add_u32 s3, s3, %d" % FFL)
    a("v_add_u32 v%d, s3, v%d" % (SBA, V_T))
    a("s_mov_b32 s6, 0x%x" % (LOG2E | 0x80000000))
    a("s_mov_b32 s7, 0x%x" % (LOG2E | 0x80000000))
    make_srd(a, SRD_P, KA['dbg'], 256)

    def ffn_tile(jg, ju, t, mt):
        base = V_EPI
        G, U, Tm = base, base + 4, base + 8
        kg, bg = acc(jg, mt)
        ku, bu = acc(ju, mt)
        for r in range(4):
            a("v_accvgpr_read_b32 v%d, a%d" % (G + r, bg + r))
        if ku == 'a':
            for r in range(4):
                a("v_accvgpr_read_b32 v%d, a%d" % (U + r, bu + r))
            us = U
        else:
            us = bu
        for p in range(2):
            a("v_cvt_pk_bf16_f32 v%d, v%d, v%d" % (Tm + 8 + p, G + 2 * p, G + 2 * p + 1))
            a("v_cvt_pk_bf16_f32 v%d, v%d, v%d" % (Tm + 10 + p, us + 2 * p, us + 2 * p + 1))
        for p in range(2):
            a("v_lshlrev_b32 v%d, 16, v%d" % (G + 2 * p, Tm + 8 + p))
            a("v_and_b32 v%d, 0xffff0000, v%d" % (G + 2 * p + 1, Tm + 8 + p))
        for p in range(2):
            a("v_pk_mul_f32 %s, %s, s[6:7]" % (vr(Tm + 2 * p, 2), vr(G + 2 * p, 2)))
        for r in range(4):
            a("v_exp_f32 v%d, v%d" % (Tm + r, Tm + r))
        for p in range(2):
            a("v_lshlrev_b32 v%d, 16, v%d" % (U + 2 * p, Tm + 10 + p))
            a("v_and_b32 v%d, 0xffff0000, v%d" % (U + 2 * p + 1, Tm + 10 + p))
        for p in range(2):
            a("v_pk_add_f32 %s, %s, 1.0 op_sel_hi:[1,0]" % (vr(Tm + 2 * p, 2), vr(Tm + 2 * p, 2)))
        for r in range(4):
            a("v_rcp_f32 v%d, v%d" % (Tm + r, Tm + r))
        a("s_nop 0")
        for p in range(2):
            a("v_pk_mul_f32 %s, %s, %s" % (vr(Tm + 2 * p, 2), vr(Tm + 2 * p, 2), vr(G + 2 * p, 2)))
        for p in range(2):
            a("v_cvt_pk_bf16_f32 v%d, v%d, v%d" % (Tm + 8 + p, Tm + 2 * p, Tm + 2 * p + 1))
        for p in range(2):
            a("v_lshlrev_b32 v%d, 16, v%d" % (Tm + 2 * p, Tm + 8 + p))
            a("v_and_b32 v%d, 0xffff0000, v%d" % (Tm + 2 * p + 1, Tm + 8 + p))
        for p in range(2):
            a("v_pk_mul_f32 %s, %s, %s" % (vr(Tm + 2 * p, 2), vr(Tm + 2 * p, 2), vr(U + 2 * p, 2)))
        for p in range(2):
            a("v_cvt_pk_bf16_f32 v%d, v%d, v%d" % (Tm + 8 + p, Tm + 2 * p, Tm + 2 * p + 1))
        a("ds_write_b64 v%d, %s offset:%d" % (SBA, vr(Tm + 8, 2), mt * 3584 + t * 32))

    a("s_cmp_eq_u32 s%d, 0" % S_CH)
    a("s_cbranch_scc1 K1_e0")
    tiles1 = [(t, mt) for t in range(5) for mt in range(4)]
    for (t, mt) in tiles1[:5]:
        ffn_tile(t, 5 + t, 2 + t, mt)
    a("s_barrier")
    for (t, mt) in tiles1[5:11]:
        ffn_tile(t, 5 + t, 2 + t, mt)
    a("s_barrier")
    for (t, mt) in tiles1[11:]:
        ffn_tile(t, 5 + t, 2 + t, mt)
    a("s_branch K1_e_join")
    a.label("K1_e0")
    a("v_and_b32 v%d, 15, v1" % V_T)
    a("v_lshlrev_b32 v%d, 4, v%d" % (V_T + 1, V_T))
    a("v_add_u32 v%d, 0x%x, v%d" % (V_T + 1, PTAB, V_T + 1))
    PR = V_EPI
    a("ds_read_b128 %s, v%d" % (vr(PR), V_T + 1))
    a("ds_read_b128 %s, v%d offset:256" % (vr(PR + 4), V_T + 1))
    a("s_movk_i32 s3, %d" % SCS)
    a("v_mul_lo_u32 v%d, s3, v%d" % (V_T, V_T))
    a("v_lshrrev_b32 v%d, 4, v1" % (V_T + 1))
    a("v_lshlrev_b32 v%d, 5, v%d" % (V_T + 1, V_T + 1))
    a("v_add_u32 v%d, v%d, v%d" % (V_T, V_T, V_T + 1))
    a("s_lshl_b32 s3, s%d, 9" % S_RB)
    a("s_add_u32 s3, s3, %d" % SCB)
    a("v_add_u32 v%d, s3, v%d" % (V_T, V_T))
    a("s_waitcnt lgkmcnt(0)")
    W = 64
    for ct in range(2):
        cr, ci = PR + 4 * ct + 2, PR + 4 * ct + 3
        for mt in range(4):
            _, ur = acc(ct, mt)
            _, ui = acc(2 + ct, mt)
            WW = W + (mt & 1) * 16
            for r in range(4):
                a("v_accvgpr_read_b32 v%d, a%d" % (WW + 8 + r, ur + r))
                a("v_accvgpr_read_b32 v%d, a%d" % (WW + 12 + r, ui + r))
            for r in range(4):
                a("v_mul_f32 v%d, v%d, v%d" % (WW + 2 * r, cr, WW + 8 + r))
                a("v_mul_f32 v%d, v%d, v%d" % (WW + 2 * r + 1, cr, WW + 12 + r))
                a("v_fma_f32 v%d, -v%d, v%d, v%d" % (WW + 2 * r, ci, WW + 12 + r, WW + 2 * r))
                a("v_fma_f32 v%d, v%d, v%d, v%d" % (WW + 2 * r + 1, ci, WW + 8 + r, WW + 2 * r + 1))
            off = ct * 16 * SCS + mt * 128
            a("ds_write_b128 v%d, %s offset:%d" % (V_T, vr(WW), off))
            a("ds_write_b128 v%d, %s offset:%d" % (V_T, vr(WW + 4), off + 16))
    a("s_waitcnt lgkmcnt(0)")
    a("s_barrier")
    a("v_and_b32 v%d, 31, v0" % V_T)
    a("v_lshlrev_b32 v%d, 4, v%d" % (V_T + 1, V_T))
    a("v_add_u32 v%d, 0x%x, v%d" % (V_T + 1, PTAB, V_T + 1))
    a("ds_read_b64 %s, v%d" % (vr(LR, 2), V_T + 1))
    a("s_movk_i32 s3, %d" % SCS)
    a("v_mul_lo_u32 v%d, s3, v%d" % (V_T, V_T))
    a("v_lshrrev_b32 v%d, 5, v0" % VSEG)
    a("v_lshlrev_b32 v%d, 8, v%d" % (V_T + 2, VSEG))
    a("v_add_u32 v%d, v%d, v%d" % (V_T, V_T, V_T + 2))
    a("v_add_u32 v%d, %d, v%d" % (V_T, SCB, V_T))
    for i in range(16):
        a("ds_read_b128 %s, v%d offset:%d" % (vr(H + 4 * i), V_T, i * 16))
    a("s_waitcnt lgkmcnt(0)")
    for i in range(1, 16):
        s1, s2 = Asm(), Asm()
        cfma(s1, H + 2 * i, H + 2 * i + 1, LR, LI, H + 2 * i - 2, H + 2 * i - 1, H + 2 * i, H + 2 * i + 1, TT)
        k = 16 + i
        cfma(s2, H + 2 * k, H + 2 * k + 1, LR, LI, H + 2 * k - 2, H + 2 * k - 1, H + 2 * k, H + 2 * k + 1, TT2)
        for x, y in zip(s1.lines, s2.lines):
            a.lines.append(x)
            a.lines.append(y)
    a("v_mov_b32 v%d, v%d" % (P16, LR))
    a("v_mov_b32 v%d, v%d" % (P16 + 1, LI))
    for i in range(4):
        cmul(a, P16, P16 + 1, P16, P16 + 1, P16, P16 + 1, TT)
    E32 = V_EPI
    cfma(a, E32, E32 + 1, P16, P16 + 1, H + 30, H + 31, H + 62, H + 63, TT)
    a("v_lshlrev_b32 v%d, 3, v0" % (V_T + 2))
    a("ds_write_b64 v%d, %s offset:%d" % (V_T + 2, vr(E32, 2), ESEG))
    cmul(a, P32, P32 + 1, P16, P16 + 1, P16, P16 + 1, TT)
    a("s_waitcnt lgkmcnt(0)")
    a("s_barrier")
    AC = V_EPI
    PWX = V_EPI + 2
    EE = V_EPI + 4
    a("v_and_b32 v%d, 31, v0" % (V_T + 2))
    a("v_lshlrev_b32 v%d, 3, v%d" % (V_T + 2, V_T + 2))
    for s_ in range(8):
        a("ds_read_b64 %s, v%d offset:%d" % (vr(EE + 2 * s_, 2), V_T + 2, ESEG + s_ * 256))
    a("v_mov_b32 v%d, 0" % AC)
    a("v_mov_b32 v%d, 0" % (AC + 1))
    a("v_mov_b32 v%d, 0" % CA)
    a("v_mov_b32 v%d, 0" % (CA + 1))
    a("v_mov_b32 v%d, 1.0" % PWX)
    a("v_mov_b32 v%d, 0" % (PWX + 1))
    a("v_mov_b32 v%d, 1.0" % PWS)
    a("v_mov_b32 v%d, 0" % (PWS + 1))
    a("s_waitcnt lgkmcnt(0)")
    for s_ in range(8):
        if s_ > 0:
            cmul(a, PWX, PWX + 1, PWX, PWX + 1, P32, P32 + 1, TT)
            a("v_cmp_eq_u32 vcc, %d, v%d" % (s_, VSEG))
            a("s_nop 1")
            a("v_cndmask_b32 v%d, v%d, v%d, vcc" % (CA, CA, AC))
            a("v_cndmask_b32 v%d, v%d, v%d, vcc" % (CA + 1, CA + 1, AC + 1))
            a("v_cndmask_b32 v%d, v%d, v%d, vcc" % (PWS, PWS, PWX))
            a("v_cndmask_b32 v%d, v%d, v%d, vcc" % (PWS + 1, PWS + 1, PWX + 1))
        cfma(a, AC, AC + 1, P32, P32 + 1, AC, AC + 1, EE + 2 * s_, EE + 2 * s_ + 1, TT)
    a("s_lshl_b32 s3, s%d, 10" % S_MI)
    a("s_lshl_b32 s4, s%d, 5" % S_NJ)
    a("s_add_u32 s3, s3, s4")
    a("s_lshl_b32 s3, s3, 3")
    a("s_add_u32 s3, s3, 0x%x" % E_OFF)
    a("v_add_u32 v%d, s3, v%d" % (V_T + 2, V_T + 2))
    a("s_cmp_lg_u32 s%d, 0" % S_WAVE)
    a("s_cbranch_scc1 K1_pub_done")
    a("v_cmp_gt_u32 vcc, 32, v0")
    a("s_and_saveexec_b64 s[4:5], vcc")
    a("buffer_store_dwordx2 %s, v%d, s[%d:%d], 0 offen sc1" % (vr(AC, 2), V_T + 2, SRD_WS, SRD_WS + 3))
    a("s_mov_b64 exec, s[4:5]")
    a("s_waitcnt vmcnt(0)")
    a("s_lshl_b32 s3, 1, s%d" % S_MI)
    a("v_mov_b32 v%d, s3" % (V_T + 3))
    a("s_lshl_b32 s3, s%d, 2" % S_NJ)
    a("v_mov_b32 v%d, s3" % (V_T + 2))
    a("v_cmp_eq_u32 vcc, 0, v0")
    a("s_and_saveexec_b64 s[4:5], vcc")
    a("buffer_atomic_or v%d, v%d, s[%d:%d], 0 offen sc1" % (V_T + 3, V_T + 2, SRD_P, SRD_P + 3))
    a("s_mov_b64 exec, s[4:5]")
    a.label("K1_pub_done")
    stamp(a, 3, SRD_WS, 0)
    for t in range(2):
        for mt in range(4):
            ffn_tile(4 + t, 6 + t, t, mt)
    a.label("K1_e_join")
    a("s_waitcnt lgkmcnt(0)")
    a("s_barrier")
    a("s_mul_i32 s3, s%d, 14336" % S_RB)
    a("s_mul_i32 s4, s%d, 7168" % S_CH)
    a("s_add_u32 s3, s3, s4")
    a("s_add_u32 s3, s3, %d" % FFL)
    a("v_lshlrev_b32 v%d, 4, v1" % V_T)
    a("v_add_u32 v%d, s3, v%d" % (V_T, V_T))
    for i in range(5):
        a("ds_read_b128 %s, v%d offset:%d" % (vr(V_EPI + i * 4), V_T, i * 1024))
    a("s_lshl_b32 s3, s%d, 8" % S_MI)
    a("s_lshl_b32 s4, s%d, 6" % S_RB)
    a("s_add_u32 s3, s3, s4")
    a("s_lshl_b32 s4, s%d, 5" % S_CH)
    a("s_add_u32 s3, s3, s4")
    a("s_mul_i32 s3, s3, 7168")
    a("s_mul_i32 s4, s%d, 224" % S_NJ)
    a("s_add_u32 s3, s3, s4")
    a("s_add_u32 s3, s3, 0x%x" % HMID_OFF)
    a("s_movk_i32 s4, 0x1c00")

    def st_addr(i):
        a("v_add_u32 v%d, %d, v1" % (V_T + 1, i * 64))
        a("v_mul_u32_u24 v%d, 0x925, v%d" % (V_T + 2, V_T + 1))
        a("v_lshrrev_b32 v%d, 15, v%d" % (V_T + 2, V_T + 2))
        a("v_mul_u32_u24 v%d, 14, v%d" % (V_T + 3, V_T + 2))
        a("v_sub_u32 v%d, v%d, v%d" % (V_T + 1, V_T + 1, V_T + 3))
        a("v_lshlrev_b32 v%d, 4, v%d" % (V_T + 1, V_T + 1))
        a("v_mul_lo_u32 v%d, s4, v%d" % (V_T + 2, V_T + 2))
        a("v_add3_u32 v%d, v%d, v%d, s3" % (V_T + 1, V_T + 1, V_T + 2))

    for i in range(5):
        st_addr(i)
        a("s_waitcnt lgkmcnt(%d)" % (4 - i))
        a("buffer_store_dwordx4 %s, v%d, s[%d:%d], 0 offen" % (vr(V_EPI + i * 4), V_T + 1, SRD_WS, SRD_WS + 3))
    a("s_nop 1")
    for i in range(5, 7):
        a("ds_read_b128 %s, v%d offset:%d" % (vr(V_EPI + (i - 5) * 4), V_T, i * 1024))
    for i in range(5, 7):
        st_addr(i)
        a("s_waitcnt lgkmcnt(%d)" % (6 - i))
        a("buffer_store_dwordx4 %s, v%d, s[%d:%d], 0 offen" % (vr(V_EPI + (i - 5) * 4), V_T + 1, SRD_WS, SRD_WS + 3))
    a("s_nop 1")
    stamp(a, 4, SRD_WS, 0)
    a("s_cmp_eq_u32 s%d, 0" % S_CH)
    a("s_cbranch_scc0 K1_d_skip")
    a("s_lshl_b32 s3, 1, s%d" % S_MI)
    a("s_sub_u32 s3, s3, 1")
    a("s_lshl_b32 s4, s%d, 2" % S_NJ)
    a("v_mov_b32 v%d, s4" % (V_T + 2))
    a("s_mov_b32 s5, 0")
    a.label("K1_poll")
    a("buffer_load_dword v%d, v%d, s[%d:%d], 0 offen sc1" % (V_T + 3, V_T + 2, SRD_P, SRD_P + 3))
    a("s_waitcnt vmcnt(0)")
    a("v_readfirstlane_b32 s6, v%d" % (V_T + 3))
    a("s_and_b32 s6, s6, s3")
    a("s_cmp_eq_u32 s6, s3")
    a("s_cbranch_scc1 K1_poll_done")
    a("s_sleep 4")
    a("s_add_u32 s5, s5, 1")
    a("s_cmp_lt_u32 s5, 0x40000")
    a("s_cbranch_scc1 K1_poll")
    a.label("K1_poll_done")
    stamp(a, 5, SRD_WS, 0)
    EJ = V_EPI
    CIN = V_EPI + 14
    P256 = V_EPI + 16
    a("s_lshl_b32 s4, s%d, 8" % S_NJ)
    a("s_add_u32 s4, s4, 0x%x" % E_OFF)
    a("v_and_b32 v%d, 31, v0" % (V_T + 2))
    a("v_lshlrev_b32 v%d, 3, v%d" % (V_T + 2, V_T + 2))
    a("v_add_u32 v%d, s4, v%d" % (V_T + 2, V_T + 2))
    for j in range(7):
        a("buffer_load_dwordx2 %s, v%d, s[%d:%d], 0 offen sc1" % (vr(EJ + 2 * j, 2), V_T + 2, SRD_WS, SRD_WS + 3))
        if j < 6:
            a("v_add_u32 v%d, 0x2000, v%d" % (V_T + 2, V_T + 2))
    a("v_mov_b32 v%d, v%d" % (P256, P32))
    a("v_mov_b32 v%d, v%d" % (P256 + 1, P32 + 1))
    for i in range(3):
        cmul(a, P256, P256 + 1, P256, P256 + 1, P256, P256 + 1, TT)
    a("v_mov_b32 v%d, 0" % CIN)
    a("v_mov_b32 v%d, 0" % (CIN + 1))
    a("s_waitcnt vmcnt(0)")
    for j in range(7):
        a("s_cmp_le_u32 s%d, %d" % (S_MI, j))
        a("s_cbranch_scc1 K1_cin_done")
        cfma(a, CIN, CIN + 1, P256, P256 + 1, CIN, CIN + 1, EJ + 2 * j, EJ + 2 * j + 1, TT)
    a.label("K1_cin_done")
    cfma(a, CA, CA + 1, PWS, PWS + 1, CIN, CIN + 1, CA, CA + 1, TT)
    a("v_lshlrev_b32 v%d, 11, v%d" % (V_T + 3, VSEG))
    a("v_and_b32 v%d, 31, v0" % (V_T + 2))
    a("v_lshlrev_b32 v%d, 1, v%d" % (V_T + 2, V_T + 2))
    a("v_add_u32 v%d, v%d, v%d" % (V_T + 2, V_T + 2, V_T + 3))
    CB = V_EPI + 2
    PW = V_EPI + 8
    cfma(a, CB, CB + 1, P16, P16 + 1, CA, CA + 1, H + 30, H + 31, TT)
    a("v_mov_b32 v%d, v%d" % (PW, LR))
    a("v_mov_b32 v%d, v%d" % (PW + 1, LI))
    for i in range(16):
        s1, s2, s3_ = Asm(), Asm(), Asm()
        cfma(s1, H + 2 * i, H + 2 * i + 1, PW, PW + 1, CA, CA + 1, H + 2 * i, H + 2 * i + 1, TT)
        s1("v_cvt_pk_bf16_f32 v%d, v%d, -v%d" % (H + 2 * i, H + 2 * i, H + 2 * i + 1))
        s1("ds_write_b16 v%d, v%d offset:%d" % (V_T + 2, H + 2 * i, HSL + i * 64))
        s1("ds_write_b16_d16_hi v%d, v%d offset:%d" % (V_T + 2, H + 2 * i, HSL + 16384 + i * 64))
        k = 16 + i
        cfma(s2, H + 2 * k, H + 2 * k + 1, PW, PW + 1, CB, CB + 1, H + 2 * k, H + 2 * k + 1, TT2)
        s2("v_cvt_pk_bf16_f32 v%d, v%d, -v%d" % (H + 2 * k, H + 2 * k, H + 2 * k + 1))
        s2("ds_write_b16 v%d, v%d offset:%d" % (V_T + 2, H + 2 * k, HSL + k * 64))
        s2("ds_write_b16_d16_hi v%d, v%d offset:%d" % (V_T + 2, H + 2 * k, HSL + 16384 + k * 64))
        PN = PW + 4 if (i % 2 == 0) else PW - 4
        if i < 15:
            s3_("v_mul_f32 v%d, v%d, v%d" % (PN, PW, LR))
            s3_("v_mul_f32 v%d, v%d, v%d" % (PN + 1, PW, LI))
            s3_("v_fma_f32 v%d, -v%d, v%d, v%d" % (PN, PW + 1, LI, PN))
            s3_("v_fma_f32 v%d, v%d, v%d, v%d" % (PN + 1, PW + 1, LR, PN + 1))
        for q in range(8):
            a.lines.append(s1.lines[q])
            a.lines.append(s2.lines[q])
            if q < len(s3_.lines):
                a.lines.append(s3_.lines[q])
        PW = PN
    a.label("K1_d_skip")
    a("s_waitcnt lgkmcnt(0)")
    a("s_barrier")
    a("s_lshl_b32 s3, s%d, 11" % S_WAVE)
    a("v_lshlrev_b32 v%d, 4, v1" % (V_T + 2))
    a("v_add_u32 v%d, s3, v%d" % (V_T + 2, V_T + 2))
    for i in range(4):
        a("ds_read_b128 %s, v%d offset:%d" % (vr(V_EPI + 4 * i), V_T + 2, HSL + (i // 2) * 16384 + (i % 2) * 1024))
    a("s_lshl_b32 s3, s%d, 8" % S_MI)
    a("s_lshl_b32 s4, s%d, 5" % S_WAVE)
    a("s_add_u32 s3, s3, s4")
    a("s_lshl_b32 s3, s3, 12")
    a("s_lshl_b32 s4, s%d, 6" % S_NJ)
    a("s_add_u32 s3, s3, s4")
    a("s_add_u32 s3, s3, 0x%x" % HS_OFF)
    a("v_lshrrev_b32 v%d, 2, v1" % (V_T + 3))
    a("v_lshlrev_b32 v%d, 12, v%d" % (V_T + 3, V_T + 3))
    a("v_and_b32 v%d, 3, v1" % (V_T + 2))
    a("v_lshlrev_b32 v%d, 4, v%d" % (V_T + 2, V_T + 2))
    a("v_add3_u32 v%d, v%d, v%d, s3" % (V_T + 2, V_T + 2, V_T + 3))
    a("v_add_u32 v%d, 0x10000, v%d" % (V_T + 3, V_T + 2))
    for i in range(4):
        a("s_waitcnt lgkmcnt(%d)" % (3 - i))
        a("buffer_store_dwordx4 %s, v%d, s[%d:%d], 0 offen offset:%d" % (vr(V_EPI + 4 * i), V_T + 2 + (i % 2), SRD_WS, SRD_WS + 3, (i // 2) * 2048))
    if STAMP:
        a("s_waitcnt vmcnt(0)")
    stamp(a, 6, SRD_WS, 0)
    a.label("K1_done")
    a("s_endpgm")
    return a.text()


DESC = kernel_desc(NAME, 256, 128)
LAUNCH = "; @launch kernel=%s grid=(256,1,1) block=(512,1,1) lds=%d" % (NAME, LDS_BYTES)
```

```python
from common import *

NAME = "k1_kernel"
XS = 32768
BMOFF = 3 * XS
WOFF = BMOFF + 16384
WS_ = 14336
PTAB = WOFF + 3 * WS_
LDS_BYTES = PTAB + 512
S_XR, S_XW, S_WR, S_WW, S_BR = 60, 61, 62, 63, 54

SRD_X, SRD_BM, SRD_W, SRD_WS, SRD_P = 8, 12, 16, 24, 28
S_SX, S_SW, S_CNT, S_WAVE, S_MI, S_NJ = 40, 41, 42, 43, 44, 45
S_MASK = 46
S_M0X, S_M0B, S_M0W = 48, 49, 50
S_GROW, S_RB, S_CH = 51, 52, 53
SRD_G = 56
V_VX = 2
V_VB = 6
V_VW = 7
V_LA = 11
V_LW = 13
V_VA = 14
V_VN = 16
V_VBM = 17
V_VBN = 19
V_VWB = 20
V_VWN = 21
V_T = 24
V_A = 40
V_RING = 72
NSLOT = 4
PD = 3
V_EPI = 40
ACCV = 96

TILES = [
    [('B', 0), ('B', 1), ('B', 2), ('B', 3), ('W', 0, 0), ('W', 0, 1), ('W', 1, 0), ('W', 1, 1)],
    [('W', 0, t) for t in range(2, 7)] + [('W', 1, t) for t in range(2, 7)],
]


def acc(j, mt):
    idx = j * 4 + mt
    if idx < 32:
        return ("a", idx * 4)
    return ("v", ACCV + (idx - 32) * 4)


def accs(j, mt):
    k, b = acc(j, mt)
    return "%s[%d:%d]" % (k, b, b + 3)


def gen():
    a = Asm()
    a("s_cmp_ge_u32 s2, 256")
    a("s_cbranch_scc1 K1_done")
    load_kernargs(a)
    a("v_lshrrev_b32 v1, 6, v0")
    a("s_nop 0")
    a("v_readfirstlane_b32 s%d, v1" % S_WAVE)
    a("s_and_b32 s%d, s2, 7" % S_NJ)
    a("s_lshl_b32 s%d, s%d, 2" % (S_NJ, S_NJ))
    a("s_lshr_b32 s3, s2, 3")
    a("s_and_b32 s3, s3, 3")
    a("s_add_u32 s%d, s%d, s3" % (S_NJ, S_NJ))
    a("s_lshr_b32 s%d, s2, 5" % S_MI)
    a("s_and_b32 s%d, s%d, 3" % (S_RB, S_WAVE))
    a("s_lshr_b32 s%d, s%d, 2" % (S_CH, S_WAVE))
    a("v_and_b32 v1, 63, v0")
    a("s_waitcnt lgkmcnt(0)")
    make_srd(a, SRD_X, KA['x'], L * D * 2)
    make_srd(a, SRD_WS, KA['ws'], WS_BYTES)
    stamp(a, 0, SRD_WS, 0)
    a("s_cmp_eq_u32 s%d, 0" % S_CH)
    for (srd, k0, k1, nb) in ((SRD_BM, 'bre', 'bim', P * D * 2), (SRD_W, 'w1', 'w3', D * F * 2)):
        a("s_cselect_b32 s%d, s%d, s%d" % (srd, KA[k0], KA[k1]))
        a("s_cselect_b32 s%d, s%d, s%d" % (srd + 1, KA[k0] + 1, KA[k1] + 1))
        a("s_mov_b32 s%d, 0x%x" % (srd + 2, nb))
        a("s_mov_b32 s%d, 0x00020000" % (srd + 3))
    a("s_and_b32 s%d, s%d, 0xffff" % (SRD_BM + 1, SRD_BM + 1))
    a("s_and_b32 s%d, s%d, 0xffff" % (SRD_W + 1, SRD_W + 1))
    a("v_lshrrev_b32 v%d, 3, v1" % (V_T + 1))
    a("v_and_b32 v%d, 7, v1" % V_T)
    a("v_xor_b32 v%d, v%d, v%d" % (V_T, V_T, V_T + 1))
    a("v_lshlrev_b32 v%d, 4, v%d" % (V_T, V_T))
    a("v_lshlrev_b32 v%d, 11, v%d" % (V_T + 1, V_T + 1))
    a("v_add_u32 v%d, v%d, v%d" % (V_T, V_T, V_T + 1))
    a("s_lshl_b32 s3, s%d, 8" % S_MI)
    a("s_lshl_b32 s4, s%d, 5" % S_WAVE)
    a("s_add_u32 s3, s3, s4")
    a("s_lshl_b32 s3, s3, 11")
    for i in range(4):
        a("s_add_u32 s4, s3, 0x%x" % (i * 8 * 2048 - i * 1024))
        a("v_add_u32 v%d, s4, v%d" % (V_VX + i, V_T))
    a("s_lshl_b32 s3, s%d, 5" % S_NJ)
    a("s_lshl_b32 s4, s%d, 3" % S_RB)
    a("s_add_u32 s3, s3, s4")
    a("s_lshl_b32 s3, s3, 11")
    a("v_add_u32 v%d, s3, v%d" % (V_VB, V_T))
    a("v_mul_u32_u24 v%d, 37, v1" % V_T)
    a("v_lshrrev_b32 v%d, 9, v%d" % (V_T, V_T))
    a("v_mul_u32_u24 v%d, 14, v%d" % (V_T + 1, V_T))
    a("v_sub_u32 v%d, v1, v%d" % (V_T + 1, V_T + 1))
    a("v_lshlrev_b32 v%d, 4, v%d" % (V_T + 1, V_T + 1))
    a("s_movk_i32 s4, 0x1c00")
    a("v_mul_lo_u32 v%d, s4, v%d" % (V_T, V_T))
    a("v_add_u32 v%d, v%d, v%d" % (V_T, V_T, V_T + 1))
    a("s_mul_i32 s3, s%d, 224" % S_NJ)
    for t in range(2):
        a("s_lshl_b32 s5, s%d, 1" % S_RB)
        a("s_add_u32 s5, s5, %d" % t)
        a("s_and_b32 s5, s5, 3")
        a("s_lshl_b32 s5, s5, 3")
        a("s_lshr_b32 s6, s%d, 1" % S_RB)
        a("s_lshl_b32 s6, s6, 2")
        a("s_add_u32 s5, s5, s6")
        a("s_mul_i32 s5, s5, 7168")
        a("s_add_u32 s5, s5, s3")
        a("s_sub_u32 s5, s5, %d" % (t * 896))
        a("v_add_u32 v%d, s5, v%d" % (V_VW + t, V_T))
    a("s_mov_b32 s%d, -1" % S_MASK)
    a("s_mov_b32 s%d, 0x00ffffff" % (S_MASK + 1))
    a("s_lshl_b32 s%d, s%d, 12" % (S_M0X, S_WAVE))
    a("s_lshl_b32 s%d, s%d, 10" % (S_M0B, S_WAVE))
    a("s_add_u32 s%d, s%d, %d" % (S_M0B, S_M0B, BMOFF))
    a("s_mul_i32 s%d, s%d, 1792" % (S_M0W, S_RB))
    a("s_mul_i32 s3, s%d, 7168" % S_CH)
    a("s_add_u32 s%d, s%d, s3" % (S_M0W, S_M0W))
    a("s_add_u32 s%d, s%d, %d" % (S_M0W, S_M0W, WOFF))
    a("s_mov_b32 s%d, 0" % S_SX)
    a("s_mov_b32 s%d, 0" % S_SW)

    a("s_mov_b32 s%d, 0" % S_XW)
    a("s_mov_b32 s%d, 0" % S_WW)
    a("s_mov_b32 s%d, 0" % S_XR)
    a("s_mov_b32 s%d, 0" % S_WR)
    a("s_mov_b32 s%d, 0" % S_BR)
    S_SB = 55
    a("s_mov_b32 s%d, 0" % S_SB)

    def rot3(s_, step):
        a("s_add_u32 s%d, s%d, %d" % (s_, s_, step))
        a("s_cmp_ge_u32 s%d, %d" % (s_, 3 * step))
        a("s_cselect_b32 s%d, 0, s%d" % (s_, s_))

    def dma_x(idx):
        if idx == 0:
            a("s_add_u32 m0, s%d, s%d" % (S_M0X, S_XW))
            a("s_nop 0")
        a.vm("buffer_load_dwordx4 v%d, s[%d:%d], s%d offen offset:%d lds" % (V_VX + idx, SRD_X, SRD_X + 3, S_SX, idx * 1024), "X")
        if idx == 3:
            a("s_add_u32 s%d, s%d, 128" % (S_SX, S_SX))
            rot3(S_XW, XS)

    def dma_b(par_expr_same_as_read):
        a("s_add_u32 m0, s%d, s%d" % (S_M0B, par_expr_same_as_read))
        a("s_nop 0")
        a.vm("buffer_load_dwordx4 v%d, s[%d:%d], s%d offen lds" % (V_VB, SRD_BM, SRD_BM + 3, S_SB), "B")
        a("s_add_u32 s%d, s%d, 128" % (S_SB, S_SB))

    def dma_w(t, tag):
        if t == 0:
            a("s_add_u32 m0, s%d, s%d" % (S_M0W, S_WW))
        a("s_mov_b64 exec, s[%d:%d]" % (S_MASK, S_MASK + 1))
        a.vm("buffer_load_dwordx4 v%d, s[%d:%d], s%d offen offset:%d lds" % (V_VW + t, SRD_W, SRD_W + 3, S_SW, t * 896), tag)
        a("s_mov_b64 exec, -1")
        if t == 1:
            a("s_add_u32 s%d, s%d, 0x%x" % (S_SW, S_SW, 32 * 7168))
            rot3(S_WW, WS_)

    for i in range(4):
        dma_x(i)
    a("s_mov_b32 s3, 0")
    dma_b(3)
    for t in range(2):
        dma_w(t, "W0")
    for t in range(2):
        dma_w(t, "W1")
    RAW = V_EPI + 40
    a("s_lshl_b32 s3, s%d, 5" % S_NJ)
    a("v_and_b32 v%d, 31, v1" % V_T)
    a("v_add_u32 v%d, s3, v%d" % (V_T, V_T))
    a("v_lshlrev_b32 v%d, 1, v%d" % (V_T, V_T))
    for i, nm in enumerate(['lre', 'lim', 'ldt']):
        sp = SRD_P + 4 * i
        make_srd(a, sp, KA[nm], P * 2)
        a.vm("buffer_load_ushort v%d, v%d, s[%d:%d], 0 offen" % (RAW + i, V_T, sp, sp + 3), "raw")
    GX = V_EPI
    GW = V_EPI + 8
    make_srd(a, SRD_G, KA['gw'], D * 2)
    a("v_lshlrev_b32 v%d, 4, v1" % V_T)
    a.vm("buffer_load_dwordx4 %s, v%d, s[%d:%d], 0 offen" % (vr(GW), V_T, SRD_G, SRD_G + 3), "g")
    a.vm("buffer_load_dwordx4 %s, v%d, s[%d:%d], 0 offen offset:1024" % (vr(GW + 4), V_T, SRD_G, SRD_G + 3), "g")
    a("s_lshl_b32 s3, s%d, 8" % S_MI)
    a("s_lshl_b32 s4, s%d, 3" % S_NJ)
    a("s_add_u32 s3, s3, s4")
    a("s_add_u32 s%d, s3, s%d" % (S_GROW, S_WAVE))
    a("s_lshl_b32 s3, s%d, 11" % S_GROW)
    a("v_add_u32 v%d, s3, v%d" % (V_T + 1, V_T))
    for q in range(2):
        a.vm("buffer_load_dwordx4 %s, v%d, s[%d:%d], 0 offen offset:%d" % (vr(GX + 4 * q), V_T + 1, SRD_X, SRD_X + 3, q * 1024), "g")
    for i in range(4):
        dma_x(i)
    a("s_movk_i32 s3, 0x2000")
    dma_b(3)
    for t in range(2):
        dma_w(t, "W0")
    make_srd(a, SRD_P, KA['w2'], F * D * 2)
    make_srd(a, SRD_P + 4, KA['cre'], D * P * 2)
    make_srd(a, SRD_P + 8, KA['cim'], D * P * 2)
    a("s_lshl_b32 s3, s2, 3")
    a("s_add_u32 s3, s3, s%d" % S_WAVE)
    a("s_mul_i32 s4, s3, 28")
    a("v_add_u32 v%d, s4, v1" % V_T)
    a("v_lshlrev_b32 v%d, 7, v%d" % (V_T, V_T))
    a("v_cmp_gt_u32 vcc, 28, v1")
    a("v_mov_b32 v%d, -1" % (V_T + 1))
    a("s_nop 0")
    a("v_cndmask_b32 v%d, v%d, v%d, vcc" % (V_T, V_T + 1, V_T))
    a.vm("buffer_load_dword v%d, v%d, s[%d:%d], 0 offen" % (V_T + 8, V_T, SRD_P, SRD_P + 3), "pf")
    a("s_lshl_b32 s4, s3, 3")
    a("v_and_b32 v%d, 7, v1" % V_T)
    a("v_add_u32 v%d, s4, v%d" % (V_T, V_T))
    a("v_lshlrev_b32 v%d, 7, v%d" % (V_T, V_T))
    a.vm("buffer_load_dword v%d, v%d, s[%d:%d], 0 offen" % (V_T + 9, V_T, SRD_P + 4, SRD_P + 7), "pf")
    a.vm("buffer_load_dword v%d, v%d, s[%d:%d], 0 offen" % (V_T + 10, V_T, SRD_P + 8, SRD_P + 11), "pf")
    a("v_lshrrev_b32 v%d, 4, v1" % V_T)
    a("v_and_b32 v%d, 7, v1" % (V_T + 1))
    a("v_xor_b32 v%d, v%d, v%d" % (V_T, V_T, V_T + 1))
    a("v_lshlrev_b32 v%d, 4, v%d" % (V_T, V_T))
    a("v_and_b32 v%d, 15, v1" % (V_T + 1))
    a("v_lshlrev_b32 v%d, 7, v%d" % (V_T + 1, V_T + 1))
    a("v_add_u32 v%d, v%d, v%d" % (V_T, V_T, V_T + 1))
    a("v_xor_b32 v%d, 64, v%d" % (V_T + 1, V_T))
    for kk in range(2):
        a("v_mov_b32 v%d, v%d" % (V_LA + kk, V_T + kk))
    a("v_lshrrev_b32 v%d, 4, v1" % V_T)
    a("v_lshlrev_b32 v%d, 2, v%d" % (V_T, V_T))
    a("v_and_b32 v%d, 15, v1" % (V_T + 1))
    a("v_lshrrev_b32 v%d, 2, v%d" % (V_T + 1, V_T + 1))
    a("v_add_u32 v%d, v%d, v%d" % (V_T, V_T, V_T + 1))
    a("v_mul_u32_u24 v%d, 0xe0, v%d" % (V_T, V_T))
    a("v_and_b32 v%d, 3, v1" % (V_T + 1))
    a("v_lshlrev_b32 v%d, 3, v%d" % (V_T + 1, V_T + 1))
    a("v_add_u32 v%d, v%d, v%d" % (V_T, V_T, V_T + 1))
    a("v_add_u32 v%d, 0x%x, v%d" % (V_LW, WOFF, V_T))
    for i in range(128):
        a("v_accvgpr_write_b32 a%d, 0" % i)
    for i in range(32):
        a("v_mov_b32 v%d, 0" % (ACCV + i))
    a.wait_vm("raw")
    PR = V_EPI + 44
    ssm_params(a, RAW, PR, V_T)
    a("v_lshlrev_b32 v%d, 4, v0" % V_T)
    a("v_add_u32 v%d, 0x%x, v%d" % (V_T, PTAB, V_T))
    a("v_cmp_gt_u32 vcc, 32, v0")
    a("s_and_saveexec_b64 s[4:5], vcc")
    a("ds_write_b128 v%d, %s" % (V_T, vr(PR)))
    a("s_mov_b64 exec, s[4:5]")
    a.wait_vm("g")
    GS = V_EPI + 16
    a("v_mov_b32 v%d, 0" % GS)
    for q in range(8):
        xs, gs = GX + q, GW + q
        a("v_lshlrev_b32 v%d, 16, v%d" % (V_T, xs))
        a("v_lshlrev_b32 v%d, 16, v%d" % (V_T + 1, gs))
        a("v_and_b32 v%d, 0xffff0000, v%d" % (V_T + 2, xs))
        a("v_and_b32 v%d, 0xffff0000, v%d" % (V_T + 3, gs))
        a("v_mul_f32 v%d, v%d, v%d" % (V_T, V_T, V_T + 1))
        a("v_mul_f32 v%d, v%d, v%d" % (V_T + 2, V_T + 2, V_T + 3))
        a("v_cvt_pk_bf16_f32 v%d, v%d, v%d" % (V_T, V_T, V_T + 2))
        a("v_lshlrev_b32 v%d, 16, v%d" % (V_T + 1, V_T))
        a("v_and_b32 v%d, 0xffff0000, v%d" % (V_T + 2, V_T))
        a("v_add_f32 v%d, v%d, v%d" % (GS, GS, V_T + 1))
        a("v_add_f32 v%d, v%d, v%d" % (GS, GS, V_T + 2))
    for k in range(6):
        a("v_xor_b32 v%d, %d, v1" % (V_T, 1 << k))
        a("v_lshlrev_b32 v%d, 2, v%d" % (V_T, V_T))
        a("ds_bpermute_b32 v%d, v%d, v%d" % (V_T + 1, V_T, GS))
        a("s_waitcnt lgkmcnt(0)")
        a("v_add_f32 v%d, v%d, v%d" % (GS, GS, V_T + 1))
    g = GS
    a("v_cvt_pk_bf16_f32 v%d, v%d, v%d" % (g, g, g))
    a("v_lshlrev_b32 v%d, 16, v%d" % (g, g))
    a("v_mul_f32 v%d, 0x%x, v%d" % (g, LOG2E | 0x80000000, g))
    a("v_exp_f32 v%d, v%d" % (g, g))
    a("s_nop 0")
    a("v_add_f32 v%d, 1.0, v%d" % (g, g))
    a("v_rcp_f32 v%d, v%d" % (g, g))
    a("s_nop 0")
    a("v_cvt_pk_bf16_f32 v%d, v%d, v%d" % (g, g, g))
    a("v_lshlrev_b32 v%d, 16, v%d" % (g, g))
    a("s_lshl_b32 s3, s%d, 2" % S_GROW)
    a("s_add_u32 s3, s3, 0x%x" % G_OFF)
    a("v_mov_b32 v%d, s3" % V_T)
    a("v_cmp_eq_u32 vcc, 0, v1")
    a("s_and_saveexec_b64 s[4:5], vcc")
    a.vm("buffer_store_dword v%d, v%d, s[%d:%d], 0 offen" % (GS, V_T, SRD_WS, SRD_WS + 3), "gst")
    a("s_mov_b64 exec, s[4:5]")
    a("s_barrier")
    stamp(a, 1, SRD_WS, 0)
    a("s_mov_b32 s%d, 0" % S_CNT)
    vq_entry = list(a.vq)

    def addr_x(dst, kk, sx):
        a("s_lshl_b32 s3, s%d, 13" % S_RB)
        a("s_add_u32 s3, s3, s%d" % sx)
        a("v_add_u32 v%d, s3, v%d" % (dst, V_LA + kk))

    def addr_b(dst, kk, sb):
        a("s_add_u32 s3, s%d, %d" % (sb, BMOFF))
        a("v_add_u32 v%d, s3, v%d" % (dst, V_LA + kk))

    def mainloop(chh):
        tl = TILES[chh]
        nt = len(tl)
        a.lq = []
        a.vq = list(vq_entry)

        def read_frag(ts, ctr, nxt):
            kk, tile = ts // nt, tl[ts % nt]
            slot = V_RING + (ctr % NSLOT) * 4
            tag = "f%d" % (ctr % NSLOT)
            if tile[0] == 'B':
                base = V_VBN if nxt else V_VBM + kk
                a.lds("ds_read_b128 %s, v%d offset:%d" % (vr(slot), base, tile[1] * 2048), tag)
            else:
                base = V_VWN if (nxt or kk == 1) else V_VWB
                for h in range(2):
                    a.lds("ds_read_b64_tr_b16 %s, v%d offset:%d" % (vr(slot + 2 * h, 2), base, tile[1] * 7168 + h * 3584 + tile[2] * 32), tag)

        def read_a(kk, mt, nxt):
            base = V_VN if nxt else V_VA + kk
            a.lds("ds_read_b128 %s, v%d offset:%d" % (vr(V_A + kk * 16 + mt * 4), base, mt * 2048), "A%d" % kk)

        addr_x(V_VN, 0, S_XR)
        addr_b(V_VBN, 0, S_BR)
        a("v_add_u32 v%d, s%d, v%d" % (V_VWN, S_WR, V_LW))
        read_a(0, 0, True)
        for jj in range(PD):
            read_a(0, jj + 1, True)
            read_frag(jj, jj, True)
        lq0 = list(a.lq)
        vq0 = [t for t in a.vq if t not in ('gst', 'pf', 'g', 'raw')]
        a.label("K1_loop%d" % chh)
        a("v_mov_b32 v%d, v%d" % (V_VA, V_VN))
        addr_x(V_VA + 1, 1, S_XR)
        a("v_mov_b32 v%d, v%d" % (V_VBM, V_VBN))
        addr_b(V_VBM + 1, 1, S_BR)
        a("v_mov_b32 v%d, v%d" % (V_VWB, V_VWN))
        rot3(S_XR, XS)
        a("s_xor_b32 s%d, s%d, 0x2000" % (S_BR, S_BR))
        rot3(S_WR, WS_)
        for ts in range(2 * nt):
            kk, j = ts // nt, ts % nt
            ctr = ts
            if 1 <= ts < 5:
                dma_x(ts - 1)
            if ts == nt - PD:
                a.wait_lds_all()
                a("s_waitcnt vmcnt(7)")
                a("s_barrier")
                a("v_add_u32 v%d, s%d, v%d" % (V_VWN, S_WR, V_LW))
                rot3(S_WR, WS_)
                dma_w(0, "W1")
                dma_w(1, "W1")
            if ts == 2 * nt - PD:
                a.wait_lds_all()
                a("s_waitcnt vmcnt(6)")
                a("s_barrier")
                addr_x(V_VN, 0, S_XR)
                addr_b(V_VBN, 0, S_BR)
                a("s_xor_b32 s3, s%d, 0x2000" % S_BR)
                dma_b(3)
                dma_w(0, "W0")
                dma_w(1, "W0")
            if ts == 2 * nt - PD:
                a("v_add_u32 v%d, s%d, v%d" % (V_VWN, S_WR, V_LW))
            if ts == 2 * nt - 3:
                read_a(0, 0, True)
            if ts >= 2 * nt - 3:
                read_a(0, ts - (2 * nt - 4), True)
            nts = ts + PD
            if nts < 2 * nt:
                read_frag(nts, ctr + PD, False)
            else:
                read_frag(nts - 2 * nt, ctr + PD, True)
            if nt - 4 <= ts < nt:
                read_a(1, ts - (nt - 4), False)
            tags = ["f%d" % (ctr % NSLOT)]
            if j == 0:
                tags.append("A%d" % kk)
            a.wait_lds(tags)
            slot = vr(V_RING + (ctr % NSLOT) * 4)
            for mt in range(4):
                xa = vr(V_A + kk * 16 + mt * 4)
                if tl[j][0] == 'B':
                    a("v_mfma_f32_16x16x32_bf16 %s, %s, %s, %s" % (accs(j, mt), xa, slot, accs(j, mt)))
                else:
                    a("v_mfma_f32_16x16x32_bf16 %s, %s, %s, %s" % (accs(j, mt), slot, xa, accs(j, mt)))
        assert a.lq == lq0, (a.lq, lq0)
        a("s_add_u32 s%d, s%d, 1" % (S_CNT, S_CNT))
        a("s_cmp_lt_u32 s%d, 16" % S_CNT)
        a("s_cbranch_scc1 K1_loop%d" % chh)

    a("s_cmp_eq_u32 s%d, 0" % S_CH)
    a("s_cbranch_scc0 K1_main1")
    mainloop(0)
    a("s_branch K1_main_end")
    a.label("K1_main1")
    mainloop(1)
    a.label("K1_main_end")
    a.wait_vm_all()
    a.wait_lds_all()
    a("s_barrier")
    a("s_nop 7")
    stamp(a, 2, SRD_WS, 0)

    SCS = 2064
    ESEG = 0
    SCB = 4096
    FFL = 73728
    HSL = 4096
    LR, LI, P16, CA, PWS, P32 = V_T + 8, V_T + 9, V_T + 10, V_T + 12, V_T + 14, V_EPI + 22
    VSEG = V_T + 7
    TT = V_T + 4
    TT2 = V_EPI + 20
    SBA = V_T + 6
    H = 64
    a("v_and_b32 v%d, 15, v1" % V_T)
    a("v_mul_u32_u24 v%d, 0xe0, v%d" % (V_T, V_T))
    a("v_lshrrev_b32 v%d, 4, v1" % (V_T + 1))
    a("v_lshlrev_b32 v%d, 3, v%d" % (V_T + 1, V_T + 1))
    a("v_add_u32 v%d, v%d, v%d" % (V_T, V_T, V_T + 1))
    a("s_mul_i32 s3, s%d, 14336" % S_RB)
    a("s_add_u32 s3, s3, %d" % FFL)
    a("v_add_u32 v%d, s3, v%d" % (SBA, V_T))
    a("s_mov_b32 s6, 0x%x" % (LOG2E | 0x80000000))
    a("s_mov_b32 s7, 0x%x" % (LOG2E | 0x80000000))
    make_srd(a, SRD_P, KA['dbg'], 256)

    def ffn_tile(jg, ju, t, mt):
        base = V_EPI
        G, U, Tm = base, base + 4, base + 8
        kg, bg = acc(jg, mt)
        ku, bu = acc(ju, mt)
        for r in range(4):
            a("v_accvgpr_read_b32 v%d, a%d" % (G + r, bg + r))
        if ku == 'a':
            for r in range(4):
                a("v_accvgpr_read_b32 v%d, a%d" % (U + r, bu + r))
            us = U
        else:
            us = bu
        for p in range(2):
            a("v_cvt_pk_bf16_f32 v%d, v%d, v%d" % (Tm + 8 + p, G + 2 * p, G + 2 * p + 1))
            a("v_cvt_pk_bf16_f32 v%d, v%d, v%d" % (Tm + 10 + p, us + 2 * p, us + 2 * p + 1))
        for p in range(2):
            a("v_lshlrev_b32 v%d, 16, v%d" % (G + 2 * p, Tm + 8 + p))
            a("v_and_b32 v%d, 0xffff0000, v%d" % (G + 2 * p + 1, Tm + 8 + p))
        for p in range(2):
            a("v_pk_mul_f32 %s, %s, s[6:7]" % (vr(Tm + 2 * p, 2), vr(G + 2 * p, 2)))
        for r in range(4):
            a("v_exp_f32 v%d, v%d" % (Tm + r, Tm + r))
        for p in range(2):
            a("v_lshlrev_b32 v%d, 16, v%d" % (U + 2 * p, Tm + 10 + p))
            a("v_and_b32 v%d, 0xffff0000, v%d" % (U + 2 * p + 1, Tm + 10 + p))
        for p in range(2):
            a("v_pk_add_f32 %s, %s, 1.0 op_sel_hi:[1,0]" % (vr(Tm + 2 * p, 2), vr(Tm + 2 * p, 2)))
        for r in range(4):
            a("v_rcp_f32 v%d, v%d" % (Tm + r, Tm + r))
        a("s_nop 0")
        for p in range(2):
            a("v_pk_mul_f32 %s, %s, %s" % (vr(Tm + 2 * p, 2), vr(Tm + 2 * p, 2), vr(G + 2 * p, 2)))
        for p in range(2):
            a("v_cvt_pk_bf16_f32 v%d, v%d, v%d" % (Tm + 8 + p, Tm + 2 * p, Tm + 2 * p + 1))
        for p in range(2):
            a("v_lshlrev_b32 v%d, 16, v%d" % (Tm + 2 * p, Tm + 8 + p))
            a("v_and_b32 v%d, 0xffff0000, v%d" % (Tm + 2 * p + 1, Tm + 8 + p))
        for p in range(2):
            a("v_pk_mul_f32 %s, %s, %s" % (vr(Tm + 2 * p, 2), vr(Tm + 2 * p, 2), vr(U + 2 * p, 2)))
        for p in range(2):
            a("v_cvt_pk_bf16_f32 v%d, v%d, v%d" % (Tm + 8 + p, Tm + 2 * p, Tm + 2 * p + 1))
        a("ds_write_b64 v%d, %s offset:%d" % (SBA, vr(Tm + 8, 2), mt * 3584 + t * 32))

    a("s_cmp_eq_u32 s%d, 0" % S_CH)
    a("s_cbranch_scc1 K1_e0")
    tiles1 = [(t, mt) for t in range(5) for mt in range(4)]
    for (t, mt) in tiles1[:5]:
        ffn_tile(t, 5 + t, 2 + t, mt)
    a("s_barrier")
    for (t, mt) in tiles1[5:11]:
        ffn_tile(t, 5 + t, 2 + t, mt)
    a("s_barrier")
    for (t, mt) in tiles1[11:]:
        ffn_tile(t, 5 + t, 2 + t, mt)
    a("s_branch K1_e_join")
    a.label("K1_e0")
    a("v_and_b32 v%d, 15, v1" % V_T)
    a("v_lshlrev_b32 v%d, 4, v%d" % (V_T + 1, V_T))
    a("v_add_u32 v%d, 0x%x, v%d" % (V_T + 1, PTAB, V_T + 1))
    PR = V_EPI
    a("ds_read_b128 %s, v%d" % (vr(PR), V_T + 1))
    a("ds_read_b128 %s, v%d offset:256" % (vr(PR + 4), V_T + 1))
    a("s_movk_i32 s3, %d" % SCS)
    a("v_mul_lo_u32 v%d, s3, v%d" % (V_T, V_T))
    a("v_lshrrev_b32 v%d, 4, v1" % (V_T + 1))
    a("v_lshlrev_b32 v%d, 5, v%d" % (V_T + 1, V_T + 1))
    a("v_add_u32 v%d, v%d, v%d" % (V_T, V_T, V_T + 1))
    a("s_lshl_b32 s3, s%d, 9" % S_RB)
    a("s_add_u32 s3, s3, %d" % SCB)
    a("v_add_u32 v%d, s3, v%d" % (V_T, V_T))
    a("s_waitcnt lgkmcnt(0)")
    W = 64
    for ct in range(2):
        cr, ci = PR + 4 * ct + 2, PR + 4 * ct + 3
        for mt in range(4):
            _, ur = acc(ct, mt)
            _, ui = acc(2 + ct, mt)
            WW = W + (mt & 1) * 16
            for r in range(4):
                a("v_accvgpr_read_b32 v%d, a%d" % (WW + 8 + r, ur + r))
                a("v_accvgpr_read_b32 v%d, a%d" % (WW + 12 + r, ui + r))
            for r in range(4):
                a("v_mul_f32 v%d, v%d, v%d" % (WW + 2 * r, cr, WW + 8 + r))
                a("v_mul_f32 v%d, v%d, v%d" % (WW + 2 * r + 1, cr, WW + 12 + r))
                a("v_fma_f32 v%d, -v%d, v%d, v%d" % (WW + 2 * r, ci, WW + 12 + r, WW + 2 * r))
                a("v_fma_f32 v%d, v%d, v%d, v%d" % (WW + 2 * r + 1, ci, WW + 8 + r, WW + 2 * r + 1))
            off = ct * 16 * SCS + mt * 128
            a("ds_write_b128 v%d, %s offset:%d" % (V_T, vr(WW), off))
            a("ds_write_b128 v%d, %s offset:%d" % (V_T, vr(WW + 4), off + 16))
    a("s_waitcnt lgkmcnt(0)")
    a("s_barrier")
    a("v_and_b32 v%d, 31, v0" % V_T)
    a("v_lshlrev_b32 v%d, 4, v%d" % (V_T + 1, V_T))
    a("v_add_u32 v%d, 0x%x, v%d" % (V_T + 1, PTAB, V_T + 1))
    a("ds_read_b64 %s, v%d" % (vr(LR, 2), V_T + 1))
    a("s_movk_i32 s3, %d" % SCS)
    a("v_mul_lo_u32 v%d, s3, v%d" % (V_T, V_T))
    a("v_lshrrev_b32 v%d, 5, v0" % VSEG)
    a("v_lshlrev_b32 v%d, 8, v%d" % (V_T + 2, VSEG))
    a("v_add_u32 v%d, v%d, v%d" % (V_T, V_T, V_T + 2))
    a("v_add_u32 v%d, %d, v%d" % (V_T, SCB, V_T))
    for i in range(16):
        a("ds_read_b128 %s, v%d offset:%d" % (vr(H + 4 * i), V_T, i * 16))
    a("s_waitcnt lgkmcnt(0)")
    for i in range(1, 16):
        s1, s2 = Asm(), Asm()
        cfma(s1, H + 2 * i, H + 2 * i + 1, LR, LI, H + 2 * i - 2, H + 2 * i - 1, H + 2 * i, H + 2 * i + 1, TT)
        k = 16 + i
        cfma(s2, H + 2 * k, H + 2 * k + 1, LR, LI, H + 2 * k - 2, H + 2 * k - 1, H + 2 * k, H + 2 * k + 1, TT2)
        for x, y in zip(s1.lines, s2.lines):
            a.lines.append(x)
            a.lines.append(y)
    a("v_mov_b32 v%d, v%d" % (P16, LR))
    a("v_mov_b32 v%d, v%d" % (P16 + 1, LI))
    for i in range(4):
        cmul(a, P16, P16 + 1, P16, P16 + 1, P16, P16 + 1, TT)
    E32 = V_EPI
    cfma(a, E32, E32 + 1, P16, P16 + 1, H + 30, H + 31, H + 62, H + 63, TT)
    a("v_lshlrev_b32 v%d, 3, v0" % (V_T + 2))
    a("ds_write_b64 v%d, %s offset:%d" % (V_T + 2, vr(E32, 2), ESEG))
    cmul(a, P32, P32 + 1, P16, P16 + 1, P16, P16 + 1, TT)
    a("s_waitcnt lgkmcnt(0)")
    a("s_barrier")
    AC = V_EPI
    PWX = V_EPI + 2
    EE = V_EPI + 4
    a("v_and_b32 v%d, 31, v0" % (V_T + 2))
    a("v_lshlrev_b32 v%d, 3, v%d" % (V_T + 2, V_T + 2))
    for s_ in range(8):
        a("ds_read_b64 %s, v%d offset:%d" % (vr(EE + 2 * s_, 2), V_T + 2, ESEG + s_ * 256))
    a("v_mov_b32 v%d, 0" % AC)
    a("v_mov_b32 v%d, 0" % (AC + 1))
    a("v_mov_b32 v%d, 0" % CA)
    a("v_mov_b32 v%d, 0" % (CA + 1))
    a("v_mov_b32 v%d, 1.0" % PWX)
    a("v_mov_b32 v%d, 0" % (PWX + 1))
    a("v_mov_b32 v%d, 1.0" % PWS)
    a("v_mov_b32 v%d, 0" % (PWS + 1))
    a("s_waitcnt lgkmcnt(0)")
    for s_ in range(8):
        if s_ > 0:
            cmul(a, PWX, PWX + 1, PWX, PWX + 1, P32, P32 + 1, TT)
            a("v_cmp_eq_u32 vcc, %d, v%d" % (s_, VSEG))
            a("s_nop 1")
            a("v_cndmask_b32 v%d, v%d, v%d, vcc" % (CA, CA, AC))
            a("v_cndmask_b32 v%d, v%d, v%d, vcc" % (CA + 1, CA + 1, AC + 1))
            a("v_cndmask_b32 v%d, v%d, v%d, vcc" % (PWS, PWS, PWX))
            a("v_cndmask_b32 v%d, v%d, v%d, vcc" % (PWS + 1, PWS + 1, PWX + 1))
        cfma(a, AC, AC + 1, P32, P32 + 1, AC, AC + 1, EE + 2 * s_, EE + 2 * s_ + 1, TT)
    a("s_lshl_b32 s3, s%d, 10" % S_MI)
    a("s_lshl_b32 s4, s%d, 5" % S_NJ)
    a("s_add_u32 s3, s3, s4")
    a("s_lshl_b32 s3, s3, 3")
    a("s_add_u32 s3, s3, 0x%x" % E_OFF)
    a("v_add_u32 v%d, s3, v%d" % (V_T + 2, V_T + 2))
    a("s_cmp_lg_u32 s%d, 0" % S_WAVE)
    a("s_cbranch_scc1 K1_pub_done")
    a("v_cmp_gt_u32 vcc, 32, v0")
    a("s_and_saveexec_b64 s[4:5], vcc")
    a("buffer_store_dwordx2 %s, v%d, s[%d:%d], 0 offen sc1" % (vr(AC, 2), V_T + 2, SRD_WS, SRD_WS + 3))
    a("s_mov_b64 exec, s[4:5]")
    a("s_waitcnt vmcnt(0)")
    a("s_lshl_b32 s3, 1, s%d" % S_MI)
    a("v_mov_b32 v%d, s3" % (V_T + 3))
    a("s_lshl_b32 s3, s%d, 2" % S_NJ)
    a("v_mov_b32 v%d, s3" % (V_T + 2))
    a("v_cmp_eq_u32 vcc, 0, v0")
    a("s_and_saveexec_b64 s[4:5], vcc")
    a("buffer_atomic_or v%d, v%d, s[%d:%d], 0 offen sc1" % (V_T + 3, V_T + 2, SRD_P, SRD_P + 3))
    a("s_mov_b64 exec, s[4:5]")
    a.label("K1_pub_done")
    stamp(a, 3, SRD_WS, 0)
    for t in range(2):
        for mt in range(4):
            ffn_tile(4 + t, 6 + t, t, mt)
    a.label("K1_e_join")
    a("s_waitcnt lgkmcnt(0)")
    a("s_barrier")
    a("s_mul_i32 s3, s%d, 14336" % S_RB)
    a("s_mul_i32 s4, s%d, 7168" % S_CH)
    a("s_add_u32 s3, s3, s4")
    a("s_add_u32 s3, s3, %d" % FFL)
    a("v_lshlrev_b32 v%d, 4, v1" % V_T)
    a("v_add_u32 v%d, s3, v%d" % (V_T, V_T))
    for i in range(5):
        a("ds_read_b128 %s, v%d offset:%d" % (vr(V_EPI + i * 4), V_T, i * 1024))
    a("s_lshl_b32 s3, s%d, 8" % S_MI)
    a("s_lshl_b32 s4, s%d, 6" % S_RB)
    a("s_add_u32 s3, s3, s4")
    a("s_lshl_b32 s4, s%d, 5" % S_CH)
    a("s_add_u32 s3, s3, s4")
    a("s_mul_i32 s3, s3, 7168")
    a("s_mul_i32 s4, s%d, 224" % S_NJ)
    a("s_add_u32 s3, s3, s4")
    a("s_add_u32 s3, s3, 0x%x" % HMID_OFF)
    a("s_movk_i32 s4, 0x1c00")

    def st_addr(i):
        a("v_add_u32 v%d, %d, v1" % (V_T + 1, i * 64))
        a("v_mul_u32_u24 v%d, 0x925, v%d" % (V_T + 2, V_T + 1))
        a("v_lshrrev_b32 v%d, 15, v%d" % (V_T + 2, V_T + 2))
        a("v_mul_u32_u24 v%d, 14, v%d" % (V_T + 3, V_T + 2))
        a("v_sub_u32 v%d, v%d, v%d" % (V_T + 1, V_T + 1, V_T + 3))
        a("v_lshlrev_b32 v%d, 4, v%d" % (V_T + 1, V_T + 1))
        a("v_mul_lo_u32 v%d, s4, v%d" % (V_T + 2, V_T + 2))
        a("v_add3_u32 v%d, v%d, v%d, s3" % (V_T + 1, V_T + 1, V_T + 2))

    for i in range(5):
        st_addr(i)
        a("s_waitcnt lgkmcnt(%d)" % (4 - i))
        a("buffer_store_dwordx4 %s, v%d, s[%d:%d], 0 offen" % (vr(V_EPI + i * 4), V_T + 1, SRD_WS, SRD_WS + 3))
    a("s_nop 1")
    for i in range(5, 7):
        a("ds_read_b128 %s, v%d offset:%d" % (vr(V_EPI + (i - 5) * 4), V_T, i * 1024))
    for i in range(5, 7):
        st_addr(i)
        a("s_waitcnt lgkmcnt(%d)" % (6 - i))
        a("buffer_store_dwordx4 %s, v%d, s[%d:%d], 0 offen" % (vr(V_EPI + (i - 5) * 4), V_T + 1, SRD_WS, SRD_WS + 3))
    a("s_nop 1")
    stamp(a, 4, SRD_WS, 0)
    a("s_cmp_eq_u32 s%d, 0" % S_CH)
    a("s_cbranch_scc0 K1_d_skip")
    a("s_lshl_b32 s3, 1, s%d" % S_MI)
    a("s_sub_u32 s3, s3, 1")
    a("s_lshl_b32 s4, s%d, 2" % S_NJ)
    a("v_mov_b32 v%d, s4" % (V_T + 2))
    a("s_mov_b32 s5, 0")
    a.label("K1_poll")
    a("buffer_load_dword v%d, v%d, s[%d:%d], 0 offen sc1" % (V_T + 3, V_T + 2, SRD_P, SRD_P + 3))
    a("s_waitcnt vmcnt(0)")
    a("v_readfirstlane_b32 s6, v%d" % (V_T + 3))
    a("s_and_b32 s6, s6, s3")
    a("s_cmp_eq_u32 s6, s3")
    a("s_cbranch_scc1 K1_poll_done")
    a("s_sleep 4")
    a("s_add_u32 s5, s5, 1")
    a("s_cmp_lt_u32 s5, 0x40000")
    a("s_cbranch_scc1 K1_poll")
    a.label("K1_poll_done")
    stamp(a, 5, SRD_WS, 0)
    EJ = V_EPI
    CIN = V_EPI + 14
    P256 = V_EPI + 16
    a("s_lshl_b32 s4, s%d, 8" % S_NJ)
    a("s_add_u32 s4, s4, 0x%x" % E_OFF)
    a("v_and_b32 v%d, 31, v0" % (V_T + 2))
    a("v_lshlrev_b32 v%d, 3, v%d" % (V_T + 2, V_T + 2))
    a("v_add_u32 v%d, s4, v%d" % (V_T + 2, V_T + 2))
    for j in range(7):
        a("buffer_load_dwordx2 %s, v%d, s[%d:%d], 0 offen sc1" % (vr(EJ + 2 * j, 2), V_T + 2, SRD_WS, SRD_WS + 3))
        if j < 6:
            a("v_add_u32 v%d, 0x2000, v%d" % (V_T + 2, V_T + 2))
    a("v_mov_b32 v%d, v%d" % (P256, P32))
    a("v_mov_b32 v%d, v%d" % (P256 + 1, P32 + 1))
    for i in range(3):
        cmul(a, P256, P256 + 1, P256, P256 + 1, P256, P256 + 1, TT)
    a("v_mov_b32 v%d, 0" % CIN)
    a("v_mov_b32 v%d, 0" % (CIN + 1))
    a("s_waitcnt vmcnt(0)")
    for j in range(7):
        a("s_cmp_le_u32 s%d, %d" % (S_MI, j))
        a("s_cbranch_scc1 K1_cin_done")
        cfma(a, CIN, CIN + 1, P256, P256 + 1, CIN, CIN + 1, EJ + 2 * j, EJ + 2 * j + 1, TT)
    a.label("K1_cin_done")
    cfma(a, CA, CA + 1, PWS, PWS + 1, CIN, CIN + 1, CA, CA + 1, TT)
    a("v_lshlrev_b32 v%d, 11, v%d" % (V_T + 3, VSEG))
    a("v_and_b32 v%d, 31, v0" % (V_T + 2))
    a("v_lshlrev_b32 v%d, 1, v%d" % (V_T + 2, V_T + 2))
    a("v_add_u32 v%d, v%d, v%d" % (V_T + 2, V_T + 2, V_T + 3))
    CB = V_EPI + 2
    PW = V_EPI + 8
    cfma(a, CB, CB + 1, P16, P16 + 1, CA, CA + 1, H + 30, H + 31, TT)
    a("v_mov_b32 v%d, v%d" % (PW, LR))
    a("v_mov_b32 v%d, v%d" % (PW + 1, LI))
    for i in range(16):
        s1, s2, s3_ = Asm(), Asm(), Asm()
        cfma(s1, H + 2 * i, H + 2 * i + 1, PW, PW + 1, CA, CA + 1, H + 2 * i, H + 2 * i + 1, TT)
        s1("v_cvt_pk_bf16_f32 v%d, v%d, -v%d" % (H + 2 * i, H + 2 * i, H + 2 * i + 1))
        s1("ds_write_b16 v%d, v%d offset:%d" % (V_T + 2, H + 2 * i, HSL + i * 64))
        s1("ds_write_b16_d16_hi v%d, v%d offset:%d" % (V_T + 2, H + 2 * i, HSL + 16384 + i * 64))
        k = 16 + i
        cfma(s2, H + 2 * k, H + 2 * k + 1, PW, PW + 1, CB, CB + 1, H + 2 * k, H + 2 * k + 1, TT2)
        s2("v_cvt_pk_bf16_f32 v%d, v%d, -v%d" % (H + 2 * k, H + 2 * k, H + 2 * k + 1))
        s2("ds_write_b16 v%d, v%d offset:%d" % (V_T + 2, H + 2 * k, HSL + k * 64))
        s2("ds_write_b16_d16_hi v%d, v%d offset:%d" % (V_T + 2, H + 2 * k, HSL + 16384 + k * 64))
        PN = PW + 4 if (i % 2 == 0) else PW - 4
        if i < 15:
            s3_("v_mul_f32 v%d, v%d, v%d" % (PN, PW, LR))
            s3_("v_mul_f32 v%d, v%d, v%d" % (PN + 1, PW, LI))
            s3_("v_fma_f32 v%d, -v%d, v%d, v%d" % (PN, PW + 1, LI, PN))
            s3_("v_fma_f32 v%d, v%d, v%d, v%d" % (PN + 1, PW + 1, LR, PN + 1))
        for q in range(8):
            a.lines.append(s1.lines[q])
            a.lines.append(s2.lines[q])
            if q < len(s3_.lines):
                a.lines.append(s3_.lines[q])
        PW = PN
    a.label("K1_d_skip")
    a("s_waitcnt lgkmcnt(0)")
    a("s_barrier")
    a("s_lshl_b32 s3, s%d, 11" % S_WAVE)
    a("v_lshlrev_b32 v%d, 4, v1" % (V_T + 2))
    a("v_add_u32 v%d, s3, v%d" % (V_T + 2, V_T + 2))
    for i in range(4):
        a("ds_read_b128 %s, v%d offset:%d" % (vr(V_EPI + 4 * i), V_T + 2, HSL + (i // 2) * 16384 + (i % 2) * 1024))
    a("s_lshl_b32 s3, s%d, 8" % S_MI)
    a("s_lshl_b32 s4, s%d, 5" % S_WAVE)
    a("s_add_u32 s3, s3, s4")
    a("s_lshl_b32 s3, s3, 12")
    a("s_lshl_b32 s4, s%d, 6" % S_NJ)
    a("s_add_u32 s3, s3, s4")
    a("s_add_u32 s3, s3, 0x%x" % HS_OFF)
    a("v_lshrrev_b32 v%d, 2, v1" % (V_T + 3))
    a("v_lshlrev_b32 v%d, 12, v%d" % (V_T + 3, V_T + 3))
    a("v_and_b32 v%d, 3, v1" % (V_T + 2))
    a("v_lshlrev_b32 v%d, 4, v%d" % (V_T + 2, V_T + 2))
    a("v_add3_u32 v%d, v%d, v%d, s3" % (V_T + 2, V_T + 2, V_T + 3))
    a("v_add_u32 v%d, 0x10000, v%d" % (V_T + 3, V_T + 2))
    for i in range(4):
        a("s_waitcnt lgkmcnt(%d)" % (3 - i))
        a("buffer_store_dwordx4 %s, v%d, s[%d:%d], 0 offen offset:%d" % (vr(V_EPI + 4 * i), V_T + 2 + (i % 2), SRD_WS, SRD_WS + 3, (i // 2) * 2048))
    if STAMP:
        a("s_waitcnt vmcnt(0)")
    stamp(a, 6, SRD_WS, 0)
    a.label("K1_done")
    a("s_endpgm")
    return a.text()


DESC = kernel_desc(NAME, 256, 128)
LAUNCH = "; @launch kernel=%s grid=(256,1,1) block=(512,1,1) lds=%d" % (NAME, LDS_BYTES)
```
